```python
import torch

def _softmax(x, axis=-1):
    return torch.softmax(x, dim=axis)

def _gelu(x):
    return torch.nn.functional.gelu(x, approximate='tanh')

def _silu(x):
    return torch.nn.functional.silu(x)

def _sigmoid(x):
    return torch.sigmoid(x)

def _layernorm(x, axis=-1, eps=1e-05):
    m = x.mean(dim=axis, keepdim=True)
    v = x.var(dim=axis, keepdim=True, unbiased=False)
    return (x - m) / torch.sqrt(v + eps)

def _scatter_add(tgt, idx, src, axis=0):
    return tgt.clone().index_add_(axis, idx, src)

def _segment_sum(src, seg, n):
    out = torch.zeros((n,) + src.shape[1:], dtype=src.dtype)
    return out.index_add_(0, seg, src)

def _pad(x, pw):
    flat = tuple((v for pair in reversed(pw) for v in pair))
    return torch.nn.functional.pad(x, flat)
kernel_name = 'interleave_layers__linear_attn_block__memory_aug_recurrent_mem_tr__prompt'

def setup_inputs():

    _w = lambda a: (lambda t: t.to(torch.bfloat16) if t.is_floating_point() else t)(torch.as_tensor(a))

    def _A_setup():
        B, S, D = (1, 2048, 576)
        return {'x': _w((lambda *s: torch.randn(*s, dtype=torch.bfloat16) * 0.05)(B, S, D)), 'wqkv': _w((lambda *s: torch.randn(*s, dtype=torch.bfloat16) * 0.05)(D, 3 * D)), 'wo': _w((lambda *s: torch.randn(*s, dtype=torch.bfloat16) * 0.05)(D, D))}
    _A_in = _A_setup()

    def _B_setup():
        B, S, Dm = (1, 2048, 576)
        H, Dh = (32, 128)
        M, seg = (8, 32)
        seg = min(seg, S)
        S = S // seg * seg
        return {'x': _w((lambda *s: torch.randn(*s, dtype=torch.bfloat16) * 0.05)(B, S, Dm)), 'mem0': _w((lambda *s: torch.randn(*s, dtype=torch.bfloat16) * 0.8)(B, M, Dm)), 'Wq': _w((lambda *s: torch.randn(*s, dtype=torch.bfloat16) * 1.6)(Dm, H, Dh) * Dm ** (-0.5)), 'Wk': _w((lambda *s: torch.randn(*s, dtype=torch.bfloat16) * 1.6)(Dm, H, Dh) * Dm ** (-0.5)), 'Wv': _w((lambda *s: torch.randn(*s, dtype=torch.bfloat16) * 0.8)(Dm, H, Dh) * Dm ** (-0.5)), 'Wo': _w((lambda *s: torch.randn(*s, dtype=torch.bfloat16) * 0.8)(H, Dh, Dm) * (H * Dh) ** (-0.5)), 'seg_len': seg}
    _B_in = _B_setup()
    return {'A_x': _A_in['x'], 'A_wqkv': _A_in['wqkv'], 'A_wo': _A_in['wo'], 'B_x': _B_in['x'], 'B_mem0': _B_in['mem0'], 'B_Wq': _B_in['Wq'], 'B_Wk': _B_in['Wk'], 'B_Wv': _B_in['Wv'], 'B_Wo': _B_in['Wo'], 'B_seg_len': _B_in['seg_len']}

def reference(A_x, A_wqkv, A_wo, B_x, B_mem0, B_Wq, B_Wk, B_Wv, B_Wo, B_seg_len):

    def _A_ref(x, wqkv, wo):
        B, S, D = x.shape
        H = 32
        Dh = D // H
        qkv = (lambda x, *d: x.permute(*d))((x @ wqkv).reshape(B, S, 3, H, Dh), 2, 0, 3, 1, 4)
        q, k, v = (qkv[0], qkv[1], qkv[2])
        phi = lambda t: torch.where(t > 0, t + 1, torch.exp(t)) + 1e-06
        pq, pk = (phi(q), phi(k))
        kv = torch.einsum('bhsd,bhse->bhde', pk, v)
        z = torch.einsum('bhsd->bhd', pk)
        num = torch.einsum('bhqd,bhde->bhqe', pq, kv)
        den = torch.einsum('bhqd,bhd->bhq', pq, z)[..., None] + 1e-06
        o = num / den
        return (lambda x, *d: x.permute(*d))(o, 0, 2, 1, 3).reshape(B, S, D) @ wo

    def _B_ref(x, mem0, Wq, Wk, Wv, Wo, seg_len):
        B, S, Dm = x.shape
        H, Dh = (Wq.shape[1], Wq.shape[2])
        M = mem0.shape[1]
        scale = Dh ** (-0.5)
        n_seg = S // seg_len
        L = M + seg_len
        idx = torch.arange(L)
        mask = (idx[:, None] < M) | (idx[:, None] >= idx[None, :])
        mem = mem0
        outs = []
        for s in range(n_seg):
            xs = x[:, s * seg_len:(s + 1) * seg_len, :].clone()
            h = torch.concatenate([mem, xs], axis=1)
            q = torch.einsum('btd,dhe->bhte', h, Wq)
            k = torch.einsum('btd,dhe->bhte', h, Wk)
            v = torch.einsum('btd,dhe->bhte', h, Wv)
            scores = torch.einsum('bhqe,bhke->bhqk', q, k) * scale
            scores = torch.where(mask[None, None], scores, -1000000000.0)
            p = _softmax(scores, axis=-1)
            o = torch.einsum('bhqk,bhke->bhqe', p, v)
            o = torch.einsum('bhte,hed->btd', o, Wo)
            mem = o[:, :M, :].clone()
            outs.append(o[:, M:, :])
        return torch.concatenate(outs, axis=1)
    x = A_x
    x = x + _A_ref(_layernorm(x, axis=-1), A_wqkv, A_wo)
    x = x + _B_ref(_layernorm(x, axis=-1), B_mem0, B_Wq, B_Wk, B_Wv, B_Wo, B_seg_len)
    x = x + _A_ref(_layernorm(x, axis=-1), A_wqkv, A_wo)
    x = x + _B_ref(_layernorm(x, axis=-1), B_mem0, B_Wq, B_Wk, B_Wv, B_Wo, B_seg_len)
    return x
```

```python
import re
REG = re.compile(r'\b([vas])(?:(\d+)|\[(\d+):(\d+)\])')
def regs(tok):
    out=set()
    for m in REG.finditer(tok):
        k=m.group(1)
        if m.group(2) is not None: out.add((k,int(m.group(2))))
        else:
            for i in range(int(m.group(3)),int(m.group(4))+1): out.add((k,i))
    if re.search(r'\bvcc\b',tok): out.add(('s','vcc'))
    if re.search(r'\bexec\b',tok): out.add(('s','exec'))
    if re.search(r'\bm0\b',tok): out.add(('s','m0'))
    return out
def r(k,b,n=1): return f"{k}{b}" if n==1 else f"{k}[{b}:{b+n-1}]"
def v(b,n=1): return r('v',b,n)
def a(b,n=1): return r('a',b,n)
def s(b,n=1): return r('s',b,n)
TRANS=('v_exp_f32','v_log_f32','v_rcp_f32','v_rsq_f32','v_sqrt_f32')
class I:
    def __init__(self,text):
        self.text=text; t=text.split(';')[0].strip()
        self.label=t.endswith(':'); self.op=t.split()[0] if t else ''
        rest=t[len(self.op):].strip(); ops=[o.strip() for o in re.split(r',(?![^\[]*\])',rest)] if rest else []
        self.ops=ops; op=self.op; self.dst=set(); self.src=set(); self.kind='other'
        allr=[regs(o) for o in ops]; U=lambda l:set().union(*l) if l else set()
        self.srcC=set(); self.wide=False; self.data=set()
        if op.startswith('v_mfma') or op.startswith('v_smfmac'):
            self.kind='mfma'; self.dst=allr[0]; self.passes=8 if '32x32' in op else 4
            if op.startswith('v_smfmac'): self.srcC=allr[0]; self.ab=U(allr[1:])
            else: self.srcC=allr[3]; self.ab=allr[1]|allr[2]
            self.src=self.ab|self.srcC
        elif op.startswith('v_'):
            self.kind='valu'; self.dst=allr[0]; self.src=U(allr[1:])
            if 'permlane' in op and 'swap' in op: self.dst=U(allr); self.src=U(allr)
            if op.startswith(('v_fmac','v_dot2c','v_writelane')) or 'dpp' in op or 'row_' in t or 'quad_perm' in t: self.src|=allr[0]
            if op.startswith(('v_add_co','v_addc_co','v_sub_co')): self.dst|=allr[1]; self.src=U(allr[2:])
            if op.startswith('v_cmpx'): self.dst.add(('s','exec'))
            self.dpp=('row_' in t or 'quad_perm' in t)
        elif op.startswith(('buffer_','global_')):
            self.kind='vm'
            if op.startswith(('buffer_wbl2','buffer_inv')): pass
            elif 'load' in op and not re.search(r'\blds\b',t): self.dst=allr[0]; self.src=U(allr[1:])
            elif 'load' in op: self.src=U(allr)|{('s','m0')}
            else:
                self.src=U(allr); self.data=allr[0]; self.wide=('x3' in op or 'x4' in op)
                if 'atomic' in op and 'sc0' in t: self.dst=allr[0]
            if 'd16' in op: self.src|=self.dst
        elif op.startswith('ds_'):
            self.kind='ds'
            if 'read' in op or 'permute' in op: self.dst=allr[0]; self.src=U(allr[1:])
            else: self.src=U(allr)
        elif op.startswith(('s_load','s_memtime','s_memrealtime')): self.kind='smem'; self.dst=allr[0]; self.src=U(allr[1:])
        elif op.startswith('s_'):
            self.kind='salu'
            if op.startswith(('s_cmp','s_cbranch','s_branch','s_waitcnt','s_nop','s_barrier','s_sleep','s_endpgm','s_setprio','s_bitcmp')): self.src=U(allr)
            else: self.dst=allr[0] if allr else set(); self.src=U(allr[1:])
            if 'saveexec' in op: self.dst.add(('s','exec'))
    def states(self):
        if self.label or not self.op or self.op.startswith('.'): return 0
        if self.op=='s_nop': return int(self.ops[0])+1
        return 1
def need(p,c):
    n=0; vec=lambda S:{x for x in S if x[0]!='s'}; sc=lambda S:{x for x in S if x[0]=='s'}
    if p.kind=='valu':
        d=vec(p.dst); ds=sc(p.dst)
        if c.kind=='mfma' and d&c.src: n=max(n,2)
        if c.kind=='mfma' and ('s','exec') in ds: n=max(n,4)
        if c.kind=='valu':
            if d&c.src and (c.dpp or 'permlane' in c.op): n=max(n,2)
            if d&c.src and c.op.startswith(('v_readlane','v_readfirstlane')): n=max(n,1)
            if d&c.src and p.op.startswith(TRANS): n=max(n,1)
            if ds&c.src: n=max(n,4 if c.op.startswith(('v_readlane','v_writelane')) else 2)
            if ('s','exec') in ds: n=max(n,5)
        if c.kind=='vm' and ds&c.src: n=max(n,5)
        if c.kind=='salu' and (ds&c.src or (('s','vcc') in ds and 'vcc' in c.op)): n=max(n,1)
    if p.kind=='mfma':
        big=p.passes==8
        if c.kind=='mfma':
            if p.dst&c.ab: n=max(n,12 if big else 8)
            if p.dst&c.srcC and not (p.dst==c.srcC and p.op==c.op): n=max(n,10 if big else 6)
            if p.dst&c.dst and not p.dst&c.srcC: n=max(n,10 if big else 6)
        elif c.kind in('valu','vm','ds'):
            if p.dst&(c.src|c.dst): n=max(n,12 if big else 8)
            if c.kind=='valu' and p.srcC&c.dst: n=max(n,7 if big else 3)
    if p.kind=='vm' and p.wide and p.data&c.dst: n=max(n,2)
    if p.kind=='salu' and ('s','m0') in p.dst and c.kind=='vm' and ('s','m0') in c.src: n=max(n,1)
    if p.kind=='salu' and ('s','exec') in p.dst and c.kind=='valu' and (c.dpp or 'permlane' in c.op): n=max(n,1)
    return n
class Asm:
    def __init__(self): self.out=[]; self.vm=[]; self.lg=[]; self.uid=0
    def lab(self,p='L'): self.uid+=1; return f"{p}_{self.uid}"
    def _emit(self,i):
        d=0; pad=0
        for p in reversed(self.out):
            if d>=12: break
            pad=max(pad,need(p,i)-d); d+=p.states()
        if pad>0: self.out.append(I(f"s_nop {pad-1}"))
        self.out.append(i)
    def wait(self,vm=None,lg=None):
        t=[]
        if vm is not None: vm=min(vm,63); t.append(f"vmcnt({vm})"); self.vm=self.vm[len(self.vm)-vm:] if 0<vm<len(self.vm) else ([] if vm==0 else self.vm)
        if lg is not None: lg=min(lg,15); t.append(f"lgkmcnt({lg})"); self.lg=self.lg[len(self.lg)-lg:] if 0<lg<len(self.lg) else ([] if lg==0 else self.lg)
        self._emit(I("s_waitcnt "+" ".join(t)))
    def forget(self):
        self.vm=[]; self.lg=[]
    def __call__(self,text):
        for line in text.split('\n'):
            line=line.strip()
            if not line: continue
            i=I(line)
            if i.label or i.op.startswith(('s_cbranch','s_branch')):
                pend=[x for x in self.vm+self.lg if x]
                assert not pend, f"pending loads at control flow point {line}: {pend}"
            use=i.src|i.dst
            nv=nl=None
            for k,x in enumerate(self.vm):
                if x&use and not (i.kind=='vm' and 'd16' in i.op): nv=len(self.vm)-1-k
            for k,x in enumerate(self.lg):
                if x&use: nl=len(self.lg)-1-k
            if nl is not None and any(('smem',0) in x for x in self.lg): nl=0
            if nv is not None or nl is not None: self.wait(nv,nl)
            self._emit(i)
            if i.kind=='vm': self.vm.append(set(i.dst))
            if i.kind=='ds': self.lg.append(set(i.dst))
            if i.kind=='smem': self.lg.append(set(i.dst)|{('smem',0)})
    def raw(self,t): self._emit(I(t))
    def text(self): return "\n".join((x.text if x.label else "  "+x.text) for x in self.out)+"\n"
```

```python
from common import *
import workers as wk
from workers import *
LPQ=76032
m8=lambda A,d,x,y,c: A(f"v_mfma_f32_32x32x8bf16_1k {v(d,16)}, {x}, {y}, {c}")
def a2(A,cfg,st):
    KVA=20;PB=68;DH=116;D=160;RS=244;LF=252;RA,PR0,PR1,TL=12,13,14,15
    A(f"s_cmp_ge_u32 s{S_WT}, 212\ns_cbranch_scc1 A2_DONE")
    trlane(A,t0,t1,t2)
    A(f"""v_and_b32 v{t3}, 1, v{t2}
    v_lshlrev_b32 v{t3}, 5, v{t3}
    v_lshl_add_u32 v{t3}, v{t0}, 4, v{t3}
    v_lshrrev_b32 v{t2}, 1, v{t2}
    v_lshl_add_u32 v{t3}, v{t2}, 3, v{t3}
    s_mul_i32 s{S_E}, s{S_W}, 9216
    s_add_u32 s{T[0]}, s{S_E}, {LPQ}
    v_add_u32 v{t3}, s{T[0]}, v{t3}
    v_lshl_add_u32 v{PR0}, v{t1}, 6, v{t3}
    v_lshl_add_u32 v{PR0}, v{G2}, 9, v{PR0}
    v_and_b32 v{t1}, 1, v{t1}
    v_lshl_add_u32 v{PR1}, v{t1}, 6, v{t3}
    s_mul_i32 s{T[0]}, s{S_W}, {8*1056}
    v_add_u32 v{TW}, s{T[0]}, v{TR}
    s_mul_i32 s{T[0]}, s{S_W}, 1056
    v_add_u32 v{TL}, s{T[0]}, v{TR}
    s_lshl_b32 s{T[0]}, s{S_W}, 6
    s_add_u32 s{T[0]}, s{T[0]}, s{S_A}
    s_cmp_lt_u32 s{T[0]}, 1152
    s_cselect_b32 s{T[0]}, s{T[0]}, {OOB}
    v_mul_u32_u24 v{RA}, 1152, v{C32}
    v_lshl_add_u32 v{RA}, v{G2}, 3, v{RA}
    v_add_u32 v{RA}, s{T[0]}, v{RA}
    v_and_b32 v{t0}, 1, v0
    v_add_u32 v{t0}, 16, v{t0}
    v_and_b32 v{t1}, 2, v0
    v_cmp_eq_u32 vcc, 0, v{t1}
    v_cndmask_b32 v{t0}, 18, v{t0}, vcc
    v_cmp_gt_u32 vcc, 16, v{C32}
    v_cndmask_b32 v{t0}, v{t0}, v{C32}, vcc
    v_lshlrev_b32 v{t0}, 7, v{t0}
    v_lshl_add_u32 v16, v{G2}, 5, v{t0}
    s_sub_u32 s{S_FL}, s{S_WT}, {192-F_A2}
    s_lshl_b32 s{S_FL}, s{S_FL}, 6
    s_mov_b32 s{S_SEG}, s{S_B}
    s_cmp_eq_u32 s{S_L}, 0
    s_cselect_b32 s{S_TG}, 192, 24
    s_lshl_b32 s{T[1]}, s{S_L}, 6
    s_add_u32 s{T[1]}, s{T[1]}, {D_KV[0]}"""); xsrd(A,XD,X1)
    wait_dbg(A,f"s{T[1]}",f"s{S_TG}",t0,t1,40); st(1)
    def pq(seg):
        A(f"s_mul_i32 s{T[0]}, s{seg}, 36864\ns_add_u32 s{T[0]}, s{T[0]}, s{S_E}\ns_add_u32 s{T[0]}, s{T[0]}, s{S_LB}\ns_add_u32 s{T[1]}, s{S_E}, {LPQ}")
        dma(A,L16,ws,9,T[1],1024,T[0],1024,'sc1')
    A(f"s_mul_i32 s{T[2]}, s{S_W}, {8*KVH}\ns_mul_i32 s{T[1]}, s{S_L}, {KVL}\ns_add_u32 s{T[2]}, s{T[2]}, s{T[1]}\ns_add_u32 s{T[2]}, s{T[2]}, {KVB}")
    for h in range(8):
        b=DH+10*h
        A(f"""buffer_load_dwordx4 {v(b,4)}, v16, {ws}, s{T[2]} offen sc1
        buffer_load_dwordx4 {v(b+4,4)}, v16, {ws}, s{T[2]} offen offset:16 sc1
        buffer_load_dwordx2 {v(b+8,2)}, v16, {ws}, s{T[2]} offen offset:64 sc1
        s_add_u32 s{T[2]}, s{T[2]}, {KVH}""")
    pq(S_SEG)
    for h in range(8):
        for i in range(5): A(f"v_cvt_pk_bf16_f32 v{KVA+6*h+i}, v{DH+10*h+2*i}, v{DH+10*h+2*i+1}")
        A(f"v_mov_b32 v{KVA+6*h+5}, 0")
    A.wait(vm=0)
    A("A2_LOOP:")
    for h in range(8):
        for x in range(2): A(f"ds_read_b64_tr_b16 {v(PB+6*h+2*x,2)}, v{PR0} offset:{(18*h+4*x)*64}")
        A(f"ds_read_b64_tr_b16 {v(PB+6*h+4,2)}, v{PR1} offset:{(18*h+16)*64}")
    A(f"s_mul_i32 s{S_D}, s{S_SEG}, 36864")
    for q in range(4): A(f"buffer_load_dwordx2 {v(RS+2*q,2)}, v{RA}, {xs}, s{S_D} offen offset:{16*q} sc1")
    def epi(h):
        d=DH+16*h
        A(f"v_add_f32 v{d+10}, 0x358637bd, v{d+10}\nv_rcp_f32 v{d+10}, v{d+10}")
        for i in range(5): A(f"v_pk_mul_f32 {v(d+2*i,2)}, {v(d+2*i,2)}, {v(d+10,2)} op_sel_hi:[1,0]")
        for i in range(4): A(f"v_cvt_pk_bf16_f32 v{d+i}, v{d+2*i}, v{d+2*i+1}")
        A(f"ds_write_b128 v{TW}, {v(d,4)} offset:{h*1056}")
        if h<4: A(f"v_cvt_pk_bf16_f32 v{LF+h}, v{d+8}, v{d+9}")
        else: A(f"v_cvt_pk_bf16_f32 v{d+8}, v{d+8}, v{d+9}\nv_cndmask_b32 v{LF+h-4}, v{LF+h-4}, v{d+8}, s[{MHI}:{MHI+1}]")
    for h in range(10):
        if h<8: mf(A,DH+16*h,v(KVA+6*h,4),v(PB+6*h,4),0)
        if 1<=h<9: m8(A,DH+16*h-16,v(KVA+6*h-2,2),v(PB+6*h-2,2),v(DH+16*h-16,16))
        if h>=2: epi(h-2)
    A(f"ds_write_b128 v{TL}, {v(LF,4)} offset:{32*1056}")
    target(A,S_SEG); A(f"s_add_u32 s{S_SEG}, s{S_SEG}, 4\ns_min_u32 s{S_C}, s{S_SEG}, 63"); bar(A); pq(S_C)
    gemm(A,lambda k,f:mf(A,D,a(4*k,4),f,v(D,16) if k else 0))
    for q in range(4): resid(A,D+4*q,RS+2*q); A(f"buffer_store_dwordx2 {v(RS+2*q,2)}, v{RA}, {xd}, s{S_D} offen offset:{16*q} sc1")
    bar(A,vm=0); w0(A,lambda:publish(A,S_FL,S_TG,t0,t1))
    A(f"s_cmp_lt_u32 s{S_SEG}, 64\ns_cbranch_scc1 A2_LOOP\nA2_DONE:"); st(2)
def attn(A,cfg,st):
    Q=20;K=52;V=84;KMR=116;VMR=148;S=156;SM=172;MK=188;O=[204,220,236,20];KA,VA,ZR=12,13,14;M=16;M2=17;SU=18
    A(f"""s_sub_u32 s{T[0]}, s{S_WT}, 192
    s_lshr_b32 s{S_SEG}, s{T[0]}, 3
    s_lshl_b32 s{T[0]}, s{T[0]}, 2
    s_add_u32 s{T[0]}, s{T[0]}, s{S_W}
    s_add_u32 s{S_FL}, s{T[0]}, {F_ATT}
    s_lshl_b32 s{S_FL}, s{S_FL}, 6
    s_and_b32 s{S_C}, s{T[0]}, 31
    s_mov_b32 s{S_E}, 0x3e0293ee
    v_min_u32 v{FLV}, 2, v0
    v_lshlrev_b32 v{FLV}, 11, v{FLV}
    v_and_b32 v{KA}, 7, v0
    v_lshlrev_b32 v{KA}, 4, v{KA}
    v_lshl_add_u32 v{KA}, v{G2}, 7, v{KA}
    v_lshlrev_b32 v{VA}, 2, v{C32}
    v_lshl_add_u32 v{VA}, v{G2}, 8, v{VA}
    v_mov_b32 v{ZR}, {96*FS}
    v_lshlrev_b32 v{t0}, 2, v{G2}
    v_sub_u32 v{t0}, v{C32}, v{t0}
    v_mov_b32 v{t1}, 0xff800000""")
    for i in range(16): A(f"v_cmp_le_i32 vcc, {8*(i>>2)+(i&3)}, v{t0}\nv_cndmask_b32 v{MK+i}, v{t1}, 0, vcc")
    A(f"AT_LOOP:\ns_add_u32 s{S_STEP}, s{S_C}, {F_QKV}\ns_lshl_b32 s{S_STEP}, s{S_STEP}, 6"); target(A,S_SEG)
    poll_ge(A,WS,FLV,f"s{S_STEP}",f"s{S_TG}",t0,41); st(3)
    A(f"""s_lshl_b32 s{S_D}, s{S_SEG}, 5
    s_add_u32 s{S_D}, s{S_D}, s{S_C}
    s_lshl_b32 s{S_PROG}, s{S_D}, 11
    s_add_u32 s{S_PROG}, s{S_PROG}, s{S_LB}
    s_lshl_b32 s{S_D}, s{S_D}, 13
    s_add_u32 s{S_D}, s{S_D}, s{S_LB}""")
    for n,(off,R) in enumerate(((QB,Q),(KB,K),(QB+4096,Q+16),(KB+4096,K+16),(VB,V),(VB+4096,V+16))):
        A(f"s_add_u32 s{T[n]}, s{S_D}, {off}")
        for i in range(4): A(f"buffer_load_dwordx4 {v(R+4*i,4)}, v{L16}, {ws}, s{T[n]} offen offset:{1024*i} sc1")
    for k in range(8): mf(A,S,v(K+4*k,4),v(Q+4*k,4),v(S if k else MK,16))
    A(f"v_max3_f32 v{M}, v{S}, v{S+1}, v{S+2}")
    for i in range(3,15,2): A(f"v_max3_f32 v{M}, v{M}, v{S+i}, v{S+i+1}")
    A.forget(); st(4); poll_ge(A,WS,ZR,f"s{S_STEP}",f"s{S_TG}",t0,42,sleep=1); st(5)
    A(f"s_add_u32 s{T[0]}, s{S_PROG}, {KM}\ns_add_u32 s{T[1]}, s{S_PROG}, {VM}\ns_add_u32 s{T[2]}, s{S_D}, {OB}\ns_add_u32 s{T[3]}, s{S_D}, {OB+4096}")
    for k in range(8): A(f"buffer_load_dwordx4 {v(KMR+4*k,4)}, v{KA}, {ws}, s{T[0]} offen offset:{256*k} sc1")
    for k in range(8): A(f"buffer_load_dword v{VMR+k}, v{VA}, {ws}, s{T[1]} offen offset:{512*(k>>1)+128*(k&1)} sc1")
    for k in range(8): mf(A,SM,v(KMR+4*k,4),v(Q+4*k,4),v(SM,16) if k else 0)
    A(f"""v_max3_f32 v{M}, v{M}, v{S+15}, v{SM}
    v_max3_f32 v{M}, v{M}, v{SM+1}, v{SM+2}
    v_max_f32 v{M2}, v{M}, v{SM+3}
    v_max_f32 v{M}, v{M}, v{SM+3}
    v_permlane32_swap_b32 v{M}, v{M2}
    v_max_f32 v{M}, v{M}, v{M2}
    v_mul_f32 v{M}, s{S_E}, v{M}""")
    pr=list(range(S,S+20,2))
    for b in pr: A(f"v_pk_fma_f32 {v(b,2)}, {v(b,2)}, s[{S_E}:{S_E+1}], {v(M,2)} op_sel_hi:[1,0,0] neg_lo:[0,0,1] neg_hi:[0,0,1]\nv_exp_f32 v{b}, v{b}\nv_exp_f32 v{b+1}, v{b+1}")
    A(f"v_pk_add_f32 {v(SU,2)}, {v(pr[0],2)}, {v(pr[1],2)}")
    for b in pr[2:]: A(f"v_pk_add_f32 {v(SU,2)}, {v(SU,2)}, {v(b,2)}")
    A(f"""v_add_f32 v{M}, v{SU}, v{SU+1}
    v_add_f32 v{M2}, v{SU}, v{SU+1}
    v_permlane32_swap_b32 v{M}, v{M2}
    v_add_f32 v{M}, v{M}, v{M2}
    v_rcp_f32 v{M}, v{M}""")
    for n,b in enumerate(pr): A(f"v_pk_mul_f32 {v(b,2)}, {v(b,2)}, {v(M,2)} op_sel_hi:[1,0]\nv_cvt_pk_bf16_f32 v{S+n}, v{b}, v{b+1}")
    for x in range(4): m8(A,O[x],v(VMR+2*x,2),v(S+8,2),0)
    def epi(x):
        for j in range(2):
            for i in range(4): A(f"v_cvt_pk_bf16_f32 v{K+8*x+4*j+i}, v{O[x]+8*j+2*i}, v{O[x]+8*j+2*i+1}")
            A(f"buffer_store_dwordx4 {v(K+8*x+4*j,4)}, v{L16}, {ws}, s{T[2+(x>>1)]} offen offset:{1024*(2*(x&1)+j)} sc1")
    for x in range(5):
        if x<4:
            for j in range(2): mf(A,O[x],v(V+8*x+4*j,4),v(S+4*j,4),v(O[x],16))
        if x: epi(x-1)
    A.wait(vm=0); publish(A,S_FL,S_TG,t0,t1); st(6)
    A(f"s_add_u32 s{S_SEG}, s{S_SEG}, 3\ns_cmp_lt_u32 s{S_SEG}, 64\ns_cbranch_scc1 AT_LOOP")
def att(A,cfg,st):
    A(f"""R_ATT:
    s_sub_u32 s{T[0]}, s{S_WT}, 192
    s_mul_i32 s{S_B}, s{T[0]}, 52
    s_lshr_b32 s{S_B}, s{S_B}, 8
    s_mul_i32 s{T[1]}, s{S_B}, 5
    s_sub_u32 s{S_A}, s{T[0]}, s{T[1]}
    s_lshl_b32 s{S_A}, s{S_A}, 8
    s_lshl_b32 s{T[1]}, s{S_W}, 10
    v_add_u32 v{t0}, s{T[1]}, v{L16}
    s_and_b32 s{T[1]}, s{T[0]}, 7
    s_lshl_b32 s{T[1]}, s{T[1]}, 12
    s_lshl_b32 s{T[0]}, s{T[0]}, 13
    s_add_u32 s{T[0]}, s{T[0]}, {KVB}
    s_add_u32 s{T[2]}, s{T[0]}, 4096
    v_mov_b64 v[12:13], 0
    v_mov_b64 v[14:15], 0""")
    for i in range(3): A(f"buffer_store_dwordx4 v[12:15], v{t0}, {ws}, s{T[i]} offen sc1")
    bar(A,vm=0); w0(A,lambda:dbg_add(A,D_READY,t0,t1))
    srd(A,WG,P_WO,576*1152)
    A(f"s_cmp_ge_u32 s{S_WT}, 212\ns_cbranch_scc1 AT_NW"); wload128(A,1152,18,True); A("AT_NW:")
    wait_dbg(A,D_READY,NREADY,t0,t1,43); st(0)
    A("AT_LAYER:"); a2(A,cfg,st); attn(A,cfg,st)
    srd(A,XS,P_WS,2048*1152,X2); nextlayer(A,"AT_LAYER")
```

```python
from common import *
IDX,L16,WB,QKW,QR,H1S,H1S9,H2S,L4,T16,AFR,T0=range(12); KXA=H2S
ACC=12;STG=28;AF=44;VA=52;VX=60;S2=68
LO=0;LMEM=2048;LQK=11264;LKX=15360;LW=23552;LSP=162816
S_C1=68;S_TAG=69;S_UNIT=70;S_H1L=71;S_KMO=72;S_VMO=73;S_VXO=74;S_FL=75;S_PROG=76;S_KNOWN=77;S_W2K=78;S_W512=79
S_WC=26;S_CL=27;S_DSO=42;S_DSH=43;S_US=3;S_H2A=59;S_H2B=2
M0_=96;MODD=98;MLO=100
ws=f"s[{WS}:{WS+3}]"; wg=f"s[{WG}:{WG+3}]"
loc={}; na=0; nv=0; nl=0
QL=[(p%4,p//4) for p in range(0,33,3)]
ORD=[8,0,1,2,3,4,5,6,7]; OSEQ=[(t,c) for t in ORD for c in range(2)]; OL=[OSEQ[p] for p in (0,1,8,9,16,17)]
for c in range(9):
    for t in range(4):
        if (t,c) in QL: loc[('qk',t,c)]=('l',nl); nl+=1
        else: loc[('qk',t,c)]=('a',na*8); na+=1
for c in range(9):
    for t in range(2): loc[('v',t,c)]=('v',72+nv*8); nv+=1
for t in range(9):
    for c in range(2):
        if (t,c) in OL: loc[('o',t,c)]=('l',nl); nl+=1
        elif na<32: loc[('o',t,c)]=('a',na*8); na+=1
        else: loc[('o',t,c)]=('v',72+nv*8); nv+=1
SB=[STG,STG+8,VA]; US=4096+128
assert na==32 and nv==23 and nl==17
def rowi(c,i): return 64*c+32*(i>>2)+8*(i&1)+2*((i>>1)&1)
def put(A,key,i,hi,r1,r0,stage):
    k,b=loc[key]; sel=S_PHI if hi else S_PLO
    if k=='v': A(f"v_perm_b32 v{b+i}, v{r1}, v{r0}, s{sel}")
    elif k=='a': A(f"v_perm_b32 v{T0}, v{r1}, v{r0}, s{sel}\nv_accvgpr_write_b32 a{b+i}, v{T0}")
    else: A(f"v_perm_b32 v{stage+i}, v{r1}, v{r0}, s{sel}")
def flush(A,key,stage,half):
    k,b=loc[key]
    if k=='l': A(f"ds_write_b128 v{WB}, {v(stage+4*half,4)} offset:{b*2048+half*1024}")
def load_weights(A):
    H=S_ROLE; g,col,ro,va=12,13,14,15
    A(f"""v_lshrrev_b32 v{g}, 4, v0
    v_and_b32 v{col}, 15, v0
    v_lshrrev_b32 v{ro}, 1, v{g}
    v_lshlrev_b32 v{ro}, 4, v{ro}
    v_and_b32 v{va}, 1, v{g}
    v_lshl_add_u32 v{ro}, v{va}, 2, v{ro}""")
    A(f"s_cmp_lt_u32 s{S_W}, 2\ns_cselect_b32 s{WG}, s{P_BQ}, s{P_BK}\ns_cselect_b32 s{WG+1}, s{P_BQ+1}, s{P_BK+1}\ns_mov_b32 s{WG+2}, {576*8192}")
    A(f"""s_and_b32 s{T[0]}, s{S_W}, 1
    s_lshl_b32 s{T[0]}, s{T[0]}, 7
    s_lshl_b32 s{T[1]}, s{H}, 8
    s_add_u32 s{T[0]}, s{T[0]}, s{T[1]}
    v_lshlrev_b32 v{va}, 13, v{ro}
    v_lshl_add_u32 v{va}, v{col}, 3, v{va}
    v_add_u32 v{va}, s{T[0]}, v{va}""")
    def ldq(c):
        b=72+(c%4)*32
        for i in range(8):
            for p in range(2):
                A(f"s_mov_b32 s{T[2]}, {(rowi(c,i)+p)*8192}\nbuffer_load_dwordx2 {v(b+i*4+p*2,2)}, v{va}, {wg}, s{T[2]} offen")
    for c in range(3): ldq(c)
    for c in range(9):
        b=72+(c%4)*32
        for i in range(8):
            for t in range(4): put(A,('qk',t,c),i,t&1,b+i*4+2+(t>>1),b+i*4+(t>>1),STG+8*t)
        for t in range(4): flush(A,('qk',t,c),STG+8*t,0); flush(A,('qk',t,c),STG+8*t,1)
        if c+3<9: ldq(c+3)
        A.wait(lg=0)
    srd(A,WG,P_BO,32*147456); vb=16
    A(f"""s_mul_i32 s{T[1]}, s{H}, 147456
    s_lshl_b32 s{T[0]}, s{S_W}, 8
    s_add_u32 s{T[0]}, s{T[0]}, s{T[1]}
    v_mul_u32_u24 v{vb}, 1152, v{ro}
    v_lshl_add_u32 v{va}, v{col}, 4, v{vb}
    v_add_u32 v{va}, s{T[0]}, v{va}
    s_lshl_b32 s{T[0]}, s{S_W}, 5
    s_add_u32 s{T[0]}, s{T[0]}, s{T[1]}
    s_add_u32 s{T[0]}, s{T[0]}, 1024
    v_lshl_add_u32 v{vb}, v{col}, 1, v{vb}
    v_add_u32 v{vb}, s{T[0]}, v{vb}""")
    for c in range(2):
        for i in range(8):
            for p in range(2):
                A(f"s_mov_b32 s{T[2]}, {(rowi(c,i)+p)*1152}\nbuffer_load_dwordx4 {v(72+c*64+i*8+p*4,4)}, v{va}, {wg}, s{T[2]} offen")
                A(f"buffer_load_ushort v{20+c*16+i*2+p}, v{vb}, {wg}, s{T[2]} offen")
    for c in range(2):
        for t in range(8):
            for i in range(8): put(A,('o',t,c),i,t&1,72+c*64+i*8+4+(t>>1),72+c*64+i*8+(t>>1),56)
            flush(A,('o',t,c),56,0); flush(A,('o',t,c),56,1); A.wait(lg=0)
        for i in range(8): put(A,('o',8,c),i,0,20+c*16+i*2+1,20+c*16+i*2,56)
        flush(A,('o',8,c),56,0); flush(A,('o',8,c),56,1); A.wait(lg=0)
    srd(A,WG,P_BV,576*8192)
    A(f"""s_lshl_b32 s{T[0]}, s{S_W}, 6
    s_lshl_b32 s{T[1]}, s{H}, 8
    s_add_u32 s{T[0]}, s{T[0]}, s{T[1]}
    v_lshlrev_b32 v{va}, 13, v{ro}
    v_lshl_add_u32 v{va}, v{col}, 2, v{va}
    v_add_u32 v{va}, s{T[0]}, v{va}""")
    def ldv(c):
        for i in range(8):
            for p in range(2):
                A(f"s_mov_b32 s{T[2]}, {(rowi(c,i)+p)*8192}\nbuffer_load_dword v{loc[('v',p,c)][1]+i}, v{va}, {wg}, s{T[2]} offen")
    for c in range(3): ldv(c)
    for c in range(9):
        for i in range(8):
            r0=loc[('v',0,c)][1]+i; r1=loc[('v',1,c)][1]+i
            A(f"v_perm_b32 v{T0}, v{r1}, v{r0}, s{S_PLO}\nv_perm_b32 v{r1}, v{r1}, v{r0}, s{S_PHI}\nv_mov_b32 v{r0}, v{T0}")
        if c+3<9: ldv(c+3)
def setup(A):
    H=S_ROLE; g,col,hi,gq,x,y,ta=12,13,14,15,16,17,18
    A(f"""v_lshrrev_b32 v{g}, 4, v0
    v_and_b32 v{col}, 15, v0
    v_lshrrev_b32 v{hi}, 5, v0
    v_and_b32 v{gq}, 1, v{g}
    v_lshlrev_b32 v{ta}, 1, v{g}
    v_lshlrev_b32 v{L16}, 4, v0
    s_mul_i32 s{T[0]}, s{S_W}, 34816
    s_add_u32 s{T[0]}, s{T[0]}, {LW}
    v_add_u32 v{WB}, s{T[0]}, v{L16}
    s_lshl_b32 s{S_W2K}, s{S_W}, 11
    s_lshl_b32 s{S_W512}, s{S_W}, 9
    v_and_b32 v{x}, 7, v0
    v_lshrrev_b32 v{y}, 3, v0
    v_xor_b32 v{AFR}, v{x}, v{y}
    v_lshlrev_b32 v{AFR}, 4, v{AFR}
    v_lshl_add_u32 v{T16}, v{x}, 7, v{AFR}
    v_add_u32 v{T16}, s{S_W2K}, v{T16}
    v_lshrrev_b32 v{x}, 2, v{col}
    v_and_b32 v{y}, 1, v{col}
    v_lshl_add_u32 v{gq}, v{x}, 1, v{y}
    v_bfe_u32 v{y}, v{col}, 1, 1
    v_add_u32 v{y}, v{y}, v{ta}
    v_xor_b32 v{AFR}, v{gq}, v{y}
    v_lshlrev_b32 v{AFR}, 4, v{AFR}
    v_lshl_add_u32 v{AFR}, v{y}, 7, v{AFR}
    v_bfe_u32 v{x}, v0, 2, 3
    s_lshl_b32 s{T[0]}, s{S_W}, 1
    v_add_u32 v{y}, s{T[0]}, v{hi}
    v_xor_b32 v{y}, v{x}, v{y}
    v_lshlrev_b32 v{y}, 4, v{y}
    v_lshl_add_u32 v{y}, v{x}, 7, v{y}
    v_and_b32 v{x}, 3, v0
    v_lshl_add_u32 v{L4}, v{x}, 2, v{y}
    v_add_u32 v{L4}, 8192, v{L4}
    v_lshrrev_b32 v{x}, 2, v{col}
    v_lshlrev_b32 v{QKW}, 8, v{x}
    v_and_b32 v{x}, 1, v{col}
    v_lshl_add_u32 v{QKW}, v{x}, 7, v{QKW}
    v_lshl_add_u32 v{QKW}, v{ta}, 4, v{QKW}
    v_bfe_u32 v{x}, v{col}, 1, 1
    v_lshl_add_u32 v{QKW}, v{x}, 3, v{QKW}
    s_lshl_b32 s{T[0]}, s{S_W}, 10
    v_add_u32 v{QKW}, s{T[0]}, v{QKW}
    v_lshlrev_b32 v{QR}, 4, v{gq}
    v_lshl_add_u32 v{QR}, v{g}, 7, v{QR}
    v_bfe_u32 v{y}, v{col}, 1, 1
    v_xor_b32 v{y}, 1, v{y}
    v_lshl_add_u32 v{QR}, v{y}, 11, v{QR}
    v_and_b32 v{x}, 7, v{col}
    v_lshrrev_b32 v{y}, 3, v{col}
    s_mul_i32 s{T[0]}, s{S_W}, {16*US}
    s_lshl_b32 s{T[1]}, s{H}, 7
    s_add_u32 s{T[1]}, s{T[1]}, {H1}
    s_add_u32 s{T[0]}, s{T[0]}, s{T[1]}
    v_lshl_add_u32 v{y}, v{y}, 3, v{ta}
    v_mul_u32_u24 v{H1S}, {US}, v{y}
    v_lshl_add_u32 v{H1S}, v{x}, 4, v{H1S}
    v_add_u32 v{H1S}, s{T[0]}, v{H1S}
    s_lshl_b32 s{T[0]}, s{S_W}, 5
    s_add_u32 s{T[0]}, s{T[0]}, s{T[1]}
    s_add_u32 s{T[0]}, s{T[0]}, {64*US}
    v_and_b32 v{y}, 1, v{col}
    v_add_u32 v{y}, v{y}, v{ta}
    v_mul_u32_u24 v{H1S9}, {US}, v{y}
    v_lshrrev_b32 v{y}, 1, v{col}
    v_lshl_add_u32 v{H1S9}, v{y}, 2, v{H1S9}
    v_add_u32 v{H1S9}, s{T[0]}, v{H1S9}
    s_lshl_b32 s{S_UNIT}, s{S_W}, 5
    s_add_u32 s{S_UNIT}, s{S_UNIT}, s{H}
    s_mul_i32 s{S_H1L}, s{S_UNIT}, {US}
    s_add_u32 s{S_H1L}, s{S_H1L}, {H1}
    s_lshl_b32 s{T[0]}, s{S_UNIT}, 7
    s_add_u32 s{T[0]}, s{T[0]}, {H2}
    s_mov_b32 s{S_US}, {US}
    s_add_u32 s{S_H2A}, s{S_W2K}, {H2}
    s_lshl_b32 s{S_H2B}, s{S_W}, 8
    s_add_u32 s{S_H2B}, s{S_H2B}, {H2+8192}
    v_lshlrev_b32 v{H2S}, 4, v{x}
    v_lshl_add_u32 v{H2S}, v{g}, 3, v{H2S}
    v_add_u32 v{H2S}, s{T[0]}, v{H2S}
    v_and_b32 v{y}, 40, v0
    v_cmp_ne_u32 vcc, 0, v{y}
    v_mov_b32 v{y}, 0x40003100
    v_cndmask_b32 v{H2S}, v{H2S}, v{y}, vcc
    v_lshrrev_b32 v{y}, 3, v{col}
    v_lshl_add_u32 v{y}, v{y}, 4, v{x}
    v_lshlrev_b32 v{y}, 4, v{y}
    v_lshl_add_u32 v{y}, v{g}, 9, v{y}
    s_cmp_eq_u32 s{S_W}, 3
    s_cselect_b64 vcc, -1, 0
    v_cndmask_b32 v{KXA}, v{H2S}, v{y}, vcc
    s_mov_b32 s{M0_}, 0x00030003
    s_mov_b32 s{M0_+1}, 0x00030003
    s_mov_b32 s{MODD}, 0xaaaaaaaa
    s_mov_b32 s{MODD+1}, 0xaaaaaaaa
    s_mov_b32 s{MLO}, -1
    s_mov_b32 s{MLO+1}, 0
    s_mov_b32 s{S_C1}, 0x3e0293ee
    s_mov_b32 s{S_TAG}, 0
    s_mov_b32 s{S_KNOWN}, 0
    s_cmp_eq_u32 s{S_W}, 3
    s_cselect_b32 s{S_DSH}, 7, 3
    s_cselect_b32 s{S_CL}, 4096, -1
    s_mov_b32 s{S_WC}, 0x40000000
    s_cmp_eq_u32 s{S_W}, 1
    s_cselect_b32 s{S_WC}, {KB-VB+32*8192-2048}, s{S_WC}
    s_cmp_eq_u32 s{S_W}, 2
    s_cselect_b32 s{S_WC}, {32*8192-4096}, s{S_WC}
    v_mov_b32 v{x}, 0
    v_lshlrev_b32 v{y}, 2, v0
    v_add_u32 v{y}, {LSP+768}, v{y}
    ds_write_b32 v{y}, v{x}
    s_lshl_b32 s{S_FL}, s{H}, 6
    s_add_u32 s{S_FL}, s{S_FL}, {F_CH*FS}""")
    for i in range(4): A(f"v_mov_b32 v{20+i}, 0")
    A(f"""buffer_store_dwordx4 v[20:23], v{H1S}, {ws}, 0 offen sc1
    buffer_store_dwordx4 v[20:23], v{H1S}, {ws}, s{S_US} offen sc1
    buffer_store_dword v20, v{H1S9}, {ws}, 0 offen sc1
    s_cmp_ge_u32 s{S_UNIT}, 72
    s_cbranch_scc1 CH_NZ
    buffer_store_dwordx2 v[20:21], v{H2S}, {ws}, 0 offen sc1
    CH_NZ:""")
    bar(A,vm=0)
    A(f"s_cmp_lg_u32 s{S_W}, 0\ns_cbranch_scc1 CH_NA"); dbg_add(A,D_READY,20,21); A("CH_NA:")
def lds_frag(A,key,buf):
    b=loc[key][1]
    A(f"ds_read_b128 {v(SB[buf],4)}, v{WB} offset:{b*2048}\nds_read_b128 {v(SB[buf]+4,4)}, v{WB} offset:{b*2048+1024}")
def smf(A,acc,af,key,buf=0):
    k,b=loc[key]; B=v(SB[buf],8) if k=='l' else r(k,b,8)
    A(f"v_smfmac_f32_16x16x64_bf16 {v(acc,4)}, {v(af,4)}, {B}, v{IDX}")
def zero(A,b,n):
    for i in range(0,n,2): A(f"v_mov_b64 {v(b+i,2)}, 0")
def retry(A,loop,code):
    skip=A.lab('nowb')
    A(f"s_and_b32 s{T[0]}, s{S_TO}, 31\ns_cbranch_scc1 {skip}\nbuffer_wbl2 sc1"); A.wait(vm=0); A(f"{skip}:")
    timeout(A,loop,code)
def check(A,rs,tmp):
    pr=[(rs[i],rs[min(i+1,len(rs)-1)]) for i in range(0,len(rs),2)]
    ne=lambda d,p: A(f"v_bitop3_b32 v{d}, v{p[0]}, v{p[1]}, s{S_TAG} bitop3:0x7e")
    ne(tmp,pr.pop(0))
    while len(pr)>=2: ne(tmp+1,pr.pop(0)); ne(tmp+2,pr.pop(0)); A(f"v_or3_b32 v{tmp}, v{tmp}, v{tmp+1}, v{tmp+2}")
    if pr: ne(tmp+1,pr.pop(0)); A(f"v_bitop3_b32 v{tmp}, v{tmp}, v{tmp+1}, 1 bitop3:0xa8")
    else: A(f"v_and_b32 v{tmp}, 1, v{tmp}")
    A(f"v_cmp_ne_u32 vcc, 0, v{tmp}")
def known(A,cfg):
    if cfg.get('only_chain'): A(f"s_mov_b32 s{S_KNOWN}, 1000"); return
    A(f"""v_mov_b32 v{T0}, {LSP+768}
    ds_read2_b32 {v(S2,2)}, v{T0} offset0:1 offset1:2
    v_min_u32 v{S2}, v{S2}, v{S2+1}
    v_readfirstlane_b32 s{T[0]}, v{S2}
    s_max_u32 s{S_KNOWN}, s{S_KNOWN}, s{T[0]}""")
def kx_fetch(A,cfg):
    ok=A.lab('kxok')
    if not cfg.get('only_chain'):
        A(f"""s_lshl_b32 s{T[0]}, s{S_L}, 6
        s_add_u32 s{T[0]}, s{T[0]}, s{S_SEG}
        s_add_u32 s{T[3]}, s{T[0]}, 1
        s_cmp_ge_u32 s{S_KNOWN}, s{T[3]}
        s_cbranch_scc1 {ok}
        v_bfe_u32 v{AF}, v{L16}, 4, 1
        v_lshlrev_b32 v{AF}, 11, v{AF}
        s_lshl_b32 s{T[1]}, s{S_ROLE}, 6
        s_add_u32 s{T[1]}, s{T[1]}, {(F_QKV+32)*FS}""")
        poll_ge(A,WS,AF,f"s{T[1]}",f"s{T[3]}",AF+1,3,sleep=1)
        A(f"v_readlane_b32 s{T[0]}, v{AF+1}, 0\nv_readlane_b32 s{T[1]}, v{AF+1}, 1\ns_min_u32 s{S_KNOWN}, s{T[0]}, s{T[1]}\n{ok}:")
    A(f"s_add_u32 s{T[0]}, s{S_VXO}, {KB-VB-3*2048}")
    for c in range(4):
        for t in range(2):
            A(f"s_mov_b32 m0, {LKX+(2*c+t)*1024-t*128}\nbuffer_load_dwordx4 v{KXA}, {ws}, s{T[0]} offen offset:{t*128} sc1 lds")
        if c<3: A(f"s_add_u32 s{T[0]}, s{T[0]}, 2048")
def pre_step(A,cfg):
    zero(A,ACC,16)
    for n in range(3): lds_frag(A,('qk',)+QL[n],n)
    bar(A)
    A(f"v_lshlrev_b32 v{T0}, 1, v{L16}\nbuffer_load_dwordx4 {v(VX,4)}, v{T0}, {ws}, s{S_VXO} offen sc1\nbuffer_load_dwordx4 {v(VX+4,4)}, v{T0}, {ws}, s{S_VXO} offen offset:16 sc1")
    A.forget(); known(A,cfg)
    A(f"""s_add_u32 s{T[0]}, s{S_WC}, s{S_VXO}
    s_add_u32 s{T[1]}, s{S_PROG}, 2
    s_cmp_ge_u32 s{S_KNOWN}, s{T[1]}
    s_cselect_b32 s{T[0]}, s{T[0]}, 0x40000000
    s_cmp_ge_u32 s{S_SEG}, 62
    s_cselect_b32 s{T[0]}, 0x40000000, s{T[0]}
    s_add_u32 s{T[1]}, s{S_FL}, {(F_QKV-F_CH)*FS}
    s_cmp_eq_u32 s{S_W}, 3
    s_cselect_b32 s{S_DSO}, s{T[1]}, s{T[0]}
    s_lshr_b32 s{T[0]}, s{S_W512}, 1
    s_add_u32 m0, s{T[0]}, {LSP}
    v_lshrrev_b32 v{S2}, 2, v{L16}""")
def chain(A,cfg):
    st=Stamp(A,cfg.get('stamp')); H=S_ROLE; stc=(lambda i:None) if cfg.get('fine') else st
    setup(A); load_weights(A)
    A(f"v_and_b32 v12, 2, v0\nv_cmp_ne_u32 vcc, 0, v12\nv_mov_b32 v12, 0x44444444\nv_mov_b32 v13, 0xeeeeeeee\nv_cndmask_b32 v{IDX}, v12, v13, vcc")
    wait_dbg(A,D_READY,32 if cfg.get('only_chain') else NREADY,12,13,1)
    srd(A,WG,P_MEM,9216)
    A(f"s_mov_b32 s{S_L}, 0\ns_mov_b32 s{S_LB}, {LB[0]}"); st.init()
    A(f"""CH_LAYER:
    s_mov_b32 s{S_SEG}, 0
    s_lshl_b32 s{S_PROG}, s{S_L}, 6
    s_lshl_b32 s{T[0]}, s{H}, 13
    s_add_u32 s{T[0]}, s{T[0]}, s{S_LB}
    s_add_u32 s{S_VXO}, s{T[0]}, {VB}
    s_add_u32 s{S_VXO}, s{S_VXO}, s{S_W2K}
    s_lshl_b32 s{T[0]}, s{H}, 11
    s_add_u32 s{T[0]}, s{T[0]}, s{S_LB}
    s_add_u32 s{T[0]}, s{T[0]}, {KM-2048}
    s_cmp_lt_u32 s{S_W}, 2
    s_cselect_b32 s{S_KMO}, 0x40003100, s{T[0]}
    s_add_u32 s{T[0]}, s{T[0]}, s{S_W512}
    s_add_u32 s{S_VMO}, s{T[0]}, {VM-KM+2048}""")
    A(f"s_cmp_lg_u32 s{S_W}, 3\ns_cbranch_scc1 CH_K0"); kx_fetch(A,cfg); A("CH_K0:")
    pre_step(A,cfg)
    A(f"""v_lshrrev_b32 v{S2+1}, 7, v{L16}
    v_mul_u32_u24 v{S2+1}, 1152, v{S2+1}
    v_and_b32 v{S2+2}, 127, v{L16}
    v_add_u32 v{S2+1}, v{S2+1}, v{S2+2}
    s_lshl_b32 s{T[0]}, s{S_W}, 8
    buffer_load_dwordx4 {v(AF,4)}, v{S2+1}, {wg}, s{T[0]} offen
    buffer_load_dwordx4 {v(AF+4,4)}, v{S2+1}, {wg}, s{T[0]} offen offset:128
    v_lshrrev_b32 v{S2+1}, 9, v{L16}
    v_mul_u32_u24 v{S2+1}, 1152, v{S2+1}
    v_bfe_u32 v{S2+2}, v{L16}, 2, 7
    v_add_u32 v{S2+1}, v{S2+1}, v{S2+2}
    s_mul_i32 s{T[0]}, s{S_W}, 2304
    buffer_load_dword v{T0}, v{S2+1}, {wg}, s{T[0]} offen offset:1024""")
    A.wait(vm=0)
    wr=f"""ds_write_b128 v{T16}, {v(AF,4)} offset:{LMEM}
    ds_write_b128 v{T16}, {v(AF+4,4)} offset:{LMEM+1024}
    ds_write_b32 v{L4}, v{T0} offset:{LMEM}"""
    A(wr); A("s_branch CH_BODY")
    A(f"CH_STEP:\ns_mov_b32 s{S_TO}, 400031\nCH_P2:")
    A(f"""buffer_load_dwordx4 {v(AF,4)}, v{L16}, {ws}, s{S_H2A} offen sc1
    buffer_load_dwordx4 {v(AF+4,4)}, v{L16}, {ws}, s{S_H2A} offen offset:1024 sc1
    buffer_load_dword v{T0}, v{S2}, {ws}, s{S_H2B} offen sc1""")
    A.wait(vm=0)
    if cfg.get('fine'): st(8)
    A(wr); check(A,list(range(AF,AF+8))+[T0],S2+1)
    if cfg.get('fine'): st(9)
    A("s_cbranch_vccz CH_BODY"); A.wait(lg=0); retry(A,"CH_P2",4)
    A("CH_BODY:"); st.cnt(6)
    A(f"s_cmp_lg_u32 s{S_W}, 0\ns_cbranch_scc1 CH_NP"); publish(A,S_FL,S_PROG,S2+1,S2+2); A("CH_NP:"); bar(A); st(0)
    AB=[S2,AF,AF+4]
    af=lambda c,b: A(f"ds_read_b128 {v(b,4)}, v{AFR} offset:{LMEM+c*1024}")
    for c in range(3): af(c,AB[c])
    A(f"v_lshlrev_b32 v{T0}, s{S_DSH}, v{L16}\nv_min_u32 v{T0}, s{S_CL}, v{T0}\nbuffer_load_dword v{T0}, {ws}, s{S_DSO} offen sc1 lds")
    for c in range(9):
        for t in range(4):
            n=QL.index((t,c)) if (t,c) in QL else 0
            smf(A,ACC+4*t,AB[c%3],('qk',t,c),n%3)
            if (t,c) in QL:
                if n+3<len(QL): lds_frag(A,('qk',)+QL[n+3],n%3)
                elif n%3==2: zero(A,VA,8)
                else: af(2*(n%3),STG+8*(n%3)); af(2*(n%3)+1,STG+8*(n%3)+4)
        if c+3<9: af(c+3,AB[c%3])
    kx=lambda c,t: A(f"ds_read_b128 {v(STG+8*(c&1)+4*t,4)}, v{L16} offset:{LKX+(2*c+t)*1024}")
    pka=lambda b: f"v_pk_add_f32 {v(b,2)}, {v(b,2)}, {v(b+2,2)}"
    vq=[(6,S2),(7,AF),(8,AF+4),(0,STG),(1,STG+4),(2,STG+8),(3,STG+12),(4,AF),(5,AF+4)]
    def vp(n):
        c,bf=vq[n]
        for t in range(2): smf(A,VA+4*t,bf,('v',t,c))
        if c in(7,8): af(c-3,bf)
        if c<4: kx(c>>1,c&1)
    sc=' sc1'
    vp(0)
    for t in range(4):
        b=ACC+4*t; A(pka(b))
        if t&1: A(f"v_cvt_pk_bf16_f32 v{S2+(t>>1)}, v{b-4}, v{b}\nv_cvt_pk_bf16_f32 v{S2+2+(t>>1)}, v{b-3}, v{b+1}")
    A(f"ds_write_b64 v{QKW}, {v(S2,2)} offset:{LQK}\nds_write_b64 v{QKW}, {v(S2+2,2)} offset:{LQK+16}")
    vp(1); vp(2); vp(3)
    A.wait(lg=3); A("s_barrier"); stc(1)
    F=[ACC,ACC+4,AF,AF+4]; S0=ACC+8; S1=ACC+12
    fr=lambda c: A(f"ds_read_b128 {v(F[c],4)}, v{QR} offset:{LQK+c*512}")
    fr(0); fr(1)
    if not cfg.get('nokm'): A(f"buffer_store_dwordx2 {v(S2,2)}, v{QKW}, {ws}, s{S_KMO} offen{sc}\nbuffer_store_dwordx2 {v(S2+2,2)}, v{QKW}, {ws}, s{S_KMO} offen offset:16{sc}")
    vp(4); vp(5); vp(6); vp(7); fr(2); vp(8); fr(3)
    mm=lambda d,x,y,c: A(f"v_mfma_f32_16x16x32_bf16 {v(d,4)}, {v(x,4)}, {v(y,4)}, {c}")
    for c in range(2):
        mm(S0,STG+8*c,F[c],v(S0,4) if c else 0); mm(S1,STG+8*c+4,F[c],v(S1,4) if c else 0); kx(c+2,0); kx(c+2,1)
    ex=[pka(VA),pka(VA+4),f"v_cvt_pk_bf16_f32 v{VA}, v{VA}, v{VA+1}",f"v_cvt_pk_bf16_f32 v{VA+1}, v{VA+4}, v{VA+5}"]
    for c in range(4): mm(S2,F[c],F[c],v(S2,4) if c else 0); A(ex[c])
    A(f"v_lshrrev_b32 v{T0}, 1, v{L16}")
    if not cfg.get('nokm'): A(f"buffer_store_dwordx2 {v(VA,2)}, v{T0}, {ws}, s{S_VMO} offen{sc}")
    PX=ACC; PM=ACC+4; ONE=VA+4; M=VA+2; M2=T0
    ex=[f"v_mov_b32 v{ONE+i}, 0x3f803f80" for i in range(4)]
    for c in range(2,4):
        mm(S0,STG+8*(c&1),F[c],v(S0,4)); A(ex.pop()); mm(S1,STG+8*(c&1)+4,F[c],v(S1,4)); A(ex.pop())
    lds_frag(A,('o',)+OL[0],0); lds_frag(A,('o',)+OL[1],1)
    A(f"""v_max_f32 v{M}, v{S2}, v{S2+1}
    v_mov_b32 v{PM+1}, 0
    v_mov_b32 v{PM+2}, 0
    v_max3_f32 v{M}, v{M}, v{S0}, v{S0+1}
    v_max3_f32 v{M}, v{M}, v{S0+2}, v{S0+3}
    v_max3_f32 v{M}, v{M}, v{S1}, v{S1+1}
    v_max3_f32 v{M2}, v{M}, v{S1+2}, v{S1+3}
    v_max3_f32 v{M}, v{M}, v{S1+2}, v{S1+3}
    v_permlane16_swap_b32 v{M}, v{M2}
    v_max_f32 v{M+1}, v{M}, v{M2}
    v_max_f32 v{M}, v{M}, v{M2}
    v_permlane32_swap_b32 v{M}, v{M+1}
    v_max_f32 v{M}, v{M}, v{M+1}
    v_mul_f32 v{M}, s{S_C1}, v{M}""")
    m16=lambda d,x,y: A(f"v_mfma_f32_16x16x16_bf16 {v(d,4)}, {v(x,2)}, {v(y,2)}, 0")
    O0=AF; O1=AF+4
    def sm(b,d):
        A(f"v_pk_fma_f32 {v(b,2)}, {v(b,2)}, s[{S_C1}:{S_C1+1}], {v(M,2)} op_sel_hi:[1,0,0] neg_lo:[0,0,1] neg_hi:[0,0,1]\nv_exp_f32 v{b}, v{b}\nv_exp_f32 v{b+1}, v{b+1}")
        return [f"v_cvt_pk_bf16_f32 v{x}, v{b}, v{b+1}" for x in d]
    p=sm(S2,[PM,PM+3]); p2=sm(S0,[PX]); A("\n".join(p+p2)); p=sm(S0+2,[PX+1])
    m16(S2,ONE,PM); A(p[0]); p=sm(S1,[PX+2]); m16(O0,VA,PM); A(p[0]); p=sm(S1+2,[PX+3]); m16(O1,VA,PM+2); A(p[0])
    stc(2)
    A(f"v_add_u32 v{T0}, s{S_W512}, v{QR}\nv_bfe_u32 v{M}, v{T0}, 7, 3")
    mm(S2,ONE,PX,v(S2,4)); mm(O0,VX,PX,v(O0,4)); mm(O1,VX+4,PX,v(O1,4))
    A(f"v_lshlrev_b32 v{M}, 4, v{M}\nv_xor_b32 v{T0}, v{T0}, v{M}"); zero(A,ACC,8); zero(A,VA,4)
    A(f"v_rcp_f32 v{S2}, v{S2}"); zero(A,VA+4,4)
    for b in (O0,O1,O0+2,O1+2): A(f"v_pk_mul_f32 {v(b,2)}, {v(b,2)}, {v(S2,2)} op_sel_hi:[1,0]")
    for i in range(4): A(f"v_cvt_pk_bf16_f32 v{O0+i}, v{O0+i}, v{O1+i}")
    A(f"ds_write_b128 v{T0}, {v(O0,4)} offset:{LO}"); zero(A,ACC+8,8); zero(A,S2,4); zero(A,VX,8)
    A(f"s_xor_b32 s{S_TAG}, s{S_TAG}, 1\ns_cmp_eq_u32 s{S_SEG}, 63")
    bar(A); A("s_cbranch_scc1 CH_LAST"); stc(3)
    A(f"ds_read_b128 {v(AF,4)}, v{AFR} offset:{LO}\nds_read_b128 {v(AF+4,4)}, v{AFR} offset:{LO+1024}")
    acc=[ACC,ACC+4,ACC+8,ACC+12,VA,VA+4,VX,VX+4,S2]; GX=ACC; GY=ACC+4
    def epi(t):
        b=acc[t]; e=[pka(b)]
        if t==8:
            e+=[f"v_mov_b32_dpp v{b+2}, v{b} quad_perm:[1,0,3,2] row_mask:0xf bank_mask:0xf",f"v_mov_b32_dpp v{b+3}, v{b+1} quad_perm:[1,0,3,2] row_mask:0xf bank_mask:0xf",
                f"v_cvt_pk_bf16_f32 v{b}, v{b}, v{b+2}",f"v_cvt_pk_bf16_f32 v{b+1}, v{b+3}, v{b+1}",
                f"v_cndmask_b32 v{b}, v{b}, v{b+1}, s[{MODD}:{MODD+1}]",f"v_and_or_b32 v{b}, v{b}, -2, s{S_TAG}",
                f"buffer_store_dword v{b}, v{H1S9}, {ws}, 0 offen"]
        elif t&1:
            p=acc[t-1]; k=t>>1
            e+=[f"v_cvt_pk_bf16_f32 v{GX+k}, v{p}, v{b}",f"v_cvt_pk_bf16_f32 v{GY+k}, v{p+1}, v{b+1}",
                f"v_and_or_b32 v{GX+k}, v{GX+k}, -2, s{S_TAG}",f"v_and_or_b32 v{GY+k}, v{GY+k}, -2, s{S_TAG}"]
        return e
    q=[]
    for n,t in enumerate(ORD):
        if n>=3: q+=epi(ORD[n-3])
        for c in range(2):
            smf(A,acc[t],AF+4*c,('o',t,c),c)
            if (t,c) in OL[:4]: lds_frag(A,('o',)+OL[OL.index((t,c))+2],c)
            for _ in range(2):
                if q: A(q.pop(0))
    for x in q+epi(5)+epi(6)+epi(7): A(x)
    A(f"buffer_store_dwordx4 {v(GX,4)}, v{H1S}, {ws}, 0 offen\nbuffer_store_dwordx4 {v(GY,4)}, v{H1S}, {ws}, s{S_US} offen")
    st(4)
    if cfg.get('ackst'): A.wait(vm=0); st(8)
    A(f"""s_add_u32 s{S_SEG}, s{S_SEG}, 1
    s_add_u32 s{S_PROG}, s{S_PROG}, 1
    s_add_u32 s{S_VXO}, s{S_VXO}, {32*8192}
    s_add_u32 s{S_KMO}, s{S_KMO}, {32*2048}
    s_add_u32 s{S_VMO}, s{S_VMO}, {32*2048}
    s_cmp_ge_u32 s{S_UNIT}, 72
    s_cbranch_scc1 CH_NOUNIT
    v_mov_b32 v{T0}, 0x3f80
    v_cndmask_b32 v{T0}, v{T0}, 1.0, s[{MODD}:{MODD+1}]""")
    for u in range(4):
        A(f"s_lshl_b64 s[{T[2]}:{T[3]}], s[{M0_}:{M0_+1}], {2*u}\nv_cndmask_b32 v{AF+u}, 0, v{T0}, s[{T[2]}:{T[3]}]")
    if cfg.get('fine'): st(1)
    A(f"s_mov_b32 s{S_TO}, 400031\nCH_P1:")
    for i in range(4): A(f"buffer_load_dwordx4 {v(STG+4*i,4)}, v{L16}, {ws}, s{S_H1L} offen offset:{i*1024} sc1")
    D=AF+4
    if cfg.get('fine'): A.wait(vm=0); st(2)
    for i in range(4): mm(D,AF,STG+4*i,v(D,4) if i else 0)
    check(A,list(range(STG,STG+16)),VX)
    if cfg.get('fine'): st(3)
    A("s_cbranch_vccz CH_G1"); retry(A,"CH_P1",5); A("CH_G1:"); st.cnt(7)
    for i in range(4): A(f"v_add_f32_dpp v{D+i}, v{D+i}, v{D+i} row_ror:8 row_mask:0xf bank_mask:0xf")
    for i in range(2): A(f"v_cvt_pk_bf16_f32 v{D+i}, v{D+2*i}, v{D+2*i+1}\nv_and_or_b32 v{D+i}, v{D+i}, -2, s{S_TAG}")
    A(f"buffer_store_dwordx2 {v(D,2)}, v{H2S}, {ws}, 0 offen")
    if cfg.get('ackst'): st(5); A.wait(vm=0); st(9)
    A("s_branch CH_F2")
    A("CH_NOUNIT:"); A.wait(vm=0); A(f"s_cmp_lg_u32 s{S_W}, 3\ns_cbranch_scc1 CH_F2\ns_cmp_eq_u32 s{S_SEG}, 63\ns_cbranch_scc1 CH_F2"); known(A,cfg); kx_fetch(A,cfg); A("CH_F2:")
    st(5); pre_step(A,cfg)
    A("s_branch CH_STEP")
    A(f"CH_LAST:\ns_xor_b32 s{S_TAG}, s{S_TAG}, 1\nbuffer_wbl2 sc1"); bar(A,vm=0)
    A(f"s_add_u32 s{S_PROG}, s{S_PROG}, 1\ns_cmp_eq_u32 s{S_W}, 3\ns_cselect_b32 s{T[0]}, s{S_FL}, 0x40003100"); publish(A,T[0],S_PROG,T0,S2)
    A(f"s_add_u32 s{S_L}, s{S_L}, 1\ns_mov_b32 s{S_LB}, {LB[1]}\ns_cmp_lt_u32 s{S_L}, 2\ns_cbranch_scc1 CH_LAYER")
    st.dump(T0,S2); A("s_branch END")
```

```python
from asmlib import *
MB=1<<20
FLAGS=0; FS=64
F_A2=0; F_QKV=32; F_CH=128; F_ATT=160; F_OUT=256
TIM=0x8000
H2=0x10000; H1=0x20000
KVB=0x80000; KVH=2560; KVL=32*KVH
X2=1*MB
LB=[4*MB, 100*MB]
PQ=0; X1=3*MB; QB=6*MB; KB=22*MB; VB=38*MB; OB=54*MB; KM=70*MB; VM=74*MB
WS=4; XS=8; WG=12; XD=16; DB=20
P_X=24;P_WQKV=26;P_WO=28;P_MEM=32;P_BQ=34;P_BK=36;P_BV=38;P_BO=40;P_OUT=44;P_DBG=46;P_WS=48
S_ROLE=50;S_W=51;S_L=52;S_SEG=53;S_LB=54;S_TO=55;S_PLO=56;S_PHI=57;S_CODE=58
T=[60,61,62,63,64,65,66,67]
D_READY=4; D_KV=[68,132]; D_ABORT=196
NREADY=56
def srd(A,d,p,size,off=None):
    if off is None: A(f"s_mov_b32 s{d}, s{p}\ns_mov_b32 s{d+1}, s{p+1}")
    else: A(f"s_add_u32 s{d}, s{p}, {off}\ns_addc_u32 s{d+1}, s{p+1}, 0")
    A(f"s_mov_b32 s{d+2}, {size}\ns_mov_b32 s{d+3}, 0x00020000")
def timeout(A,loop,code):
    A(f"s_mov_b32 s{S_CODE}, {code}\ns_sub_u32 s{S_TO}, s{S_TO}, 1\ns_cbranch_scc0 {loop}\ns_branch ABORT")
def poll_ge(A,sr,voff,soff,tgt,vt,code,sleep=2):
    l=A.lab('poll'); d=A.lab('pdone')
    A(f"s_mov_b32 s{S_TO}, 150000\n{l}:\nbuffer_load_dword v{vt}, v{voff}, s[{sr}:{sr+3}], {soff} offen sc1")
    A(f"v_cmp_gt_u32 vcc, {tgt}, v{vt}\ns_cbranch_vccz {d}")
    if sleep: A(f"s_sleep {sleep}")
    timeout(A,l,code); A(f"{d}:")
def wait_dbg(A,off,n,v0,v1,code):
    A(f"v_mov_b32 v{v0}, {off}"); poll_ge(A,DB,v0,0,n,v1,code)
def dbg_add(A,off,v0,v1):
    A(f"s_mov_b64 exec, 1\nv_mov_b32 v{v0}, {off}\nv_mov_b32 v{v1}, 1\nbuffer_atomic_add v{v1}, v{v0}, s[{DB}:{DB+3}], 0 offen sc1\ns_mov_b64 exec, -1")
def publish(A,soff,sval,v0,v1):
    A(f"s_mov_b64 exec, 1\nv_mov_b32 v{v0}, 0\nv_mov_b32 v{v1}, s{sval}\nbuffer_store_dword v{v1}, v{v0}, s[{WS}:{WS+3}], s{soff} offen sc1\ns_mov_b64 exec, -1")
def bar(A,vm=None):
    A.wait(vm=vm,lg=0); A("s_barrier")
def prologue(A,cfg):
    A(f"""s_cmp_ge_u32 s2, 256
    s_cbranch_scc1 END
    s_load_dwordx16 s[24:39], s[0:1], 0
    s_load_dwordx8 s[40:47], s[0:1], 64
    s_load_dwordx2 s[48:49], s[0:1], 96
    v_lshrrev_b32 v1, 6, v0
    v_readfirstlane_b32 s{S_W}, v1
    s_getreg_b32 s{T[0]}, hwreg(HW_REG_XCC_ID)
    s_and_b32 s{T[0]}, s{T[0]}, 7
    s_mov_b32 s{S_PLO}, 0x05040100
    s_mov_b32 s{S_PHI}, 0x07060302
    s_mov_b32 s{S_CODE}, 0""")
    if cfg.get('scatter'): A(f"s_lshr_b32 s{T[0]}, s2, 5")
    A.wait(lg=0)
    if cfg.get('stamp'): A('s_memrealtime s[30:31]'); A.wait(lg=0)
    srd(A,WS,P_WS,0x10000000); srd(A,DB,P_DBG,256); srd(A,XS,P_X,2048*1152); srd(A,XD,P_OUT,2048*1152); srd(A,WG,P_WQKV,576*3456)
    A(f"""s_cmp_lg_u32 s{S_W}, 0
    s_cbranch_scc1 TK_WAIT
    s_mov_b64 exec, 1
    s_mov_b32 s{T[1]}, 8
    TK_LOOP:
    s_lshl_b32 s{T[2]}, s{T[0]}, 5
    v_mov_b32 v1, s{T[2]}
    v_mov_b32 v2, 1
    buffer_atomic_add v2, v1, s[{DB}:{DB+3}], 0 offen sc0 sc1
    v_readfirstlane_b32 s{T[3]}, v2
    s_cmp_lt_u32 s{T[3]}, 32
    s_cbranch_scc1 TK_GOT
    s_add_u32 s{T[0]}, s{T[0]}, 1
    s_and_b32 s{T[0]}, s{T[0]}, 7
    s_sub_u32 s{T[1]}, s{T[1]}, 1
    s_cmp_lg_u32 s{T[1]}, 0
    s_cbranch_scc1 TK_LOOP
    s_mov_b32 s{T[2]}, 256
    s_mov_b32 s{T[3]}, 0
    TK_GOT:
    s_add_u32 s{T[2]}, s{T[2]}, s{T[3]}
    v_mov_b32 v1, 0
    v_mov_b32 v2, s{T[2]}
    ds_write_b32 v1, v2
    s_mov_b64 exec, -1
    TK_WAIT:""")
    bar(A)
    A(f"v_mov_b32 v1, 0\nds_read_b32 v2, v1\nv_readfirstlane_b32 s{S_ROLE}, v2")
    bar(A)
    A(f"v_and_b32 v0, 63, v0")
def epilogue(A):
    A(f"""ABORT:
    s_mov_b64 exec, 1
    v_mov_b32 v1, {D_ABORT}
    s_lshl_b32 s{S_CODE}, s{S_CODE}, 16
    s_lshl_b32 s{T[0]}, s{S_ROLE}, 8
    s_or_b32 s{S_CODE}, s{S_CODE}, s{T[0]}
    s_or_b32 s{S_CODE}, s{S_CODE}, s{S_SEG}
    v_mov_b32 v2, s{S_CODE}
    buffer_store_dword v2, v1, s[{DB}:{DB+3}], 0 offen
    END:
    s_endpgm""")
class Stamp:
    def __init__(s,A,on,real=False): s.A=A; s.on=on; s.op='s_memrealtime' if real else 's_memtime'
    def init(s):
        if s.on:
            for i in range(12): s.A(f"s_mov_b32 s{84+i}, 0")
            s.A("s_memrealtime s[82:83]"); s.A.wait(lg=0); s.A("s_sub_u32 s94, s82, s30\n"+s.op+" s[80:81]"); s.A.wait(lg=0)
    def __call__(s,i):
        if s.on:
            s.A(s.op+" s[82:83]"); s.A.wait(lg=0)
            s.A(f"s_sub_u32 s81, s82, s80\ns_add_u32 s{84+i}, s{84+i}, s81\ns_mov_b32 s80, s82")
    def cnt(s,i):
        if s.on: s.A(f"s_sub_u32 s81, 400032, s{S_TO}\ns_min_u32 s81, s81, 50\ns_add_u32 s{84+i}, s{84+i}, s81")
    def dump(s,vt0,vt1):
        if s.on:
            A=s.A; A("s_memrealtime s[82:83]"); A.wait(lg=0); A("s_sub_u32 s95, s82, s30"); A(f"s_lshl_b32 s{T[0]}, s{S_ROLE}, 2\ns_add_u32 s{T[0]}, s{T[0]}, s{S_W}\ns_lshl_b32 s{T[0]}, s{T[0]}, 6\ns_add_u32 s{T[0]}, s{T[0]}, 0xE0000")
            for i in range(12):
                publish(A,T[0],84+i,vt0,vt1); A(f"s_add_u32 s{T[0]}, s{T[0]}, 4")
```

```python
from common import *
ws=f"s[{WS}:{WS+3}]"; wg=f"s[{WG}:{WG+3}]"; xs=f"s[{XS}:{XS+3}]"; xd=f"s[{XD}:{XD+3}]"
S_WT=68;S_STEP=69;S_FL=70;S_PROG=71;S_A=72;S_B=73;S_C=74;S_D=75;S_BUF=76;S_TG=77;S_E=78;S_F=79
MHI=96; OOB=0x40000000; TB=38016
XA,TW,TR,FLV,L16,G2,C32=1,2,3,4,5,6,7
t0,t1,t2,t3=8,9,10,11
RAW=20;FF=56;RING=128
mf=lambda A,d,x,y,c: A(f"v_mfma_f32_32x32x16_bf16 {v(d,16)}, {x}, {y}, {c}")
def setup(A):
    A(f"""s_sub_u32 s{S_WT}, s{S_ROLE}, 32
    v_lshlrev_b32 v{L16}, 4, v0
    v_lshrrev_b32 v{G2}, 5, v0
    v_and_b32 v{C32}, 31, v0
    v_lshrrev_b32 v{t0}, 3, v0
    s_lshl_b32 s{T[0]}, s{S_W}, 3
    v_add_u32 v{t0}, s{T[0]}, v{t0}
    v_and_b32 v{t1}, 7, v0
    v_mul_u32_u24 v{XA}, 1152, v{t0}
    v_lshl_add_u32 v{XA}, v{t1}, 4, v{XA}
    v_mul_u32_u24 v{TW}, 528, v{t1}
    v_lshl_add_u32 v{TW}, v{t0}, 4, v{TW}
    v_mul_u32_u24 v{TR}, 528, v{G2}
    v_lshl_add_u32 v{TR}, v{C32}, 4, v{TR}
    s_mov_b32 s{MHI}, 0
    s_mov_b32 s{MHI+1}, -1
    s_mov_b32 s{S_L}, 0
    s_mov_b32 s{S_SEG}, 0
    s_mov_b32 s{S_BUF}, 0
    s_mov_b32 s{S_LB}, {LB[0]}""")
def target(A,seg,add=1): A(f"s_lshl_b32 s{S_TG}, s{S_L}, 6\ns_add_u32 s{S_TG}, s{S_TG}, s{seg}\ns_add_u32 s{S_TG}, s{S_TG}, {add}")
def ldx(A,seg):
    A(f"s_mul_i32 s{T[0]}, s{seg}, 36864")
    for i in range(9): A(f"buffer_load_dwordx4 {v(RAW+4*i,4)}, v{XA}, {xs}, s{T[0]} offen offset:{128*i} sc1")
    A.forget()
def red8(A,x):
    for m in ("quad_perm:[1,0,3,2]","quad_perm:[2,3,0,1]","row_half_mirror"): A(f"v_add_f32_dpp v{x}, v{x}, v{x} {m} row_mask:0xf bank_mask:0xf")
def ln(A):
    for i in range(36): A(f"v_lshlrev_b32 v{FF+2*i}, 16, v{RAW+i}\nv_and_b32 v{FF+2*i+1}, 0xffff0000, v{RAW+i}")
    P=lambda i:v(FF+2*i,2)
    A(f"v_pk_add_f32 v[8:9], {P(0)}, {P(1)}\nv_pk_add_f32 v[10:11], {P(2)}, {P(3)}")
    for i in range(4,36,2): A(f"v_pk_add_f32 v[8:9], v[8:9], {P(i)}\nv_pk_add_f32 v[10:11], v[10:11], {P(i+1)}")
    A("v_pk_add_f32 v[8:9], v[8:9], v[10:11]\nv_add_f32 v8, v8, v9"); red8(A,8)
    A("v_mul_f32 v8, 0xbae38e39, v8")
    for i in range(36): A(f"v_pk_add_f32 {P(i)}, {P(i)}, v[8:9] op_sel_hi:[1,0]")
    A(f"v_pk_mul_f32 v[8:9], {P(0)}, {P(0)}\nv_pk_mul_f32 v[10:11], {P(1)}, {P(1)}")
    for i in range(2,36,2): A(f"v_pk_fma_f32 v[8:9], {P(i)}, {P(i)}, v[8:9]\nv_pk_fma_f32 v[10:11], {P(i+1)}, {P(i+1)}, v[10:11]")
    A("v_pk_add_f32 v[8:9], v[8:9], v[10:11]\nv_add_f32 v8, v8, v9"); red8(A,8)
    A("v_mov_b32 v9, 0x3727c5ac\nv_fmac_f32 v9, 0x3ae38e39, v8\nv_rsq_f32 v8, v9")
    for i in range(36): A(f"v_pk_mul_f32 {P(i)}, {P(i)}, v[8:9] op_sel_hi:[1,0]\nv_cvt_pk_bf16_f32 v{RING+i}, v{FF+2*i}, v{FF+2*i+1}")
def tile_write(A):
    A(f"s_xor_b32 s{S_BUF}, s{S_BUF}, {TB}\nv_add_u32 v{t0}, s{S_BUF}, v{TW}")
    for i in range(9): A(f"ds_write_b128 v{t0}, {v(RING+4*i,4)} offset:{i*4224}")
def gemm(A,f,nb=6):
    A(f"v_add_u32 v{t0}, s{S_BUF}, v{TR}")
    rd=lambda k: A(f"ds_read_b128 {v(RING+4*(k%nb),4)}, v{t0} offset:{k*1056}")
    for k in range(nb): rd(k)
    for k in range(36):
        f(k,v(RING+4*(k%nb),4))
        if k+nb<36: rd(k+nb)
def dma(A,va,sr,n,m0base,m0step,so,sostep,fl=''):
    for i in range(n):
        A(f"s_mov_b32 m0, s{m0base}\ns_add_u32 s{m0base}, s{m0base}, {m0step}\nbuffer_load_dwordx4 v{va}, {sr}, s{so} offen {fl} lds\ns_add_u32 s{so}, s{so}, {sostep}")
def trlane(A,cb,r,c): A(f"v_bfe_u32 v{cb}, v0, 4, 1\nv_bfe_u32 v{r}, v0, 2, 2\nv_and_b32 v{c}, 3, v0")
def wload128(A,stride,rows_per_ks,a2):
    bar(A)
    A(f"""v_lshrrev_b32 v{t0}, 4, v0
    v_and_b32 v{t1}, 15, v0
    v_lshlrev_b32 v{t2}, 2, v{t0}
    v_xor_b32 v{t1}, v{t1}, v{t2}
    v_lshlrev_b32 v{t1}, 4, v{t1}
    v_mul_u32_u24 v{t2}, {stride}, v{t0}
    v_add_u32 v{t2}, v{t2}, v{t1}""")
    if a2: A(f"s_and_b32 s{T[0]}, s{S_W}, 1\ns_lshl_b32 s{T[0]}, s{T[0]}, 1\ns_lshr_b32 s{T[1]}, s{S_W}, 1\ns_add_u32 s{T[0]}, s{T[0]}, s{T[1]}\ns_mul_i32 s{T[0]}, s{T[0]}, {4*stride}")
    else: A(f"s_mul_i32 s{T[0]}, s{S_W}, {4*stride}")
    A(f"s_add_u32 s{T[0]}, s{T[0]}, s{S_A}\ns_lshl_b32 s{T[1]}, s{S_W}, 10")
    dma(A,t2,wg,32 if a2 else 36,T[1],4096,T[0],rows_per_ks*stride)
    if a2:
        A(f"""v_lshrrev_b32 v{t2}, 1, v{t0}
        v_mul_u32_u24 v{t2}, 18, v{t2}
        v_and_b32 v{t0}, 1, v{t0}
        v_add_u32 v{t2}, v{t2}, v{t0}
        v_mul_u32_u24 v{t2}, {stride}, v{t2}
        v_add_u32 v{t2}, v{t2}, v{t1}
        s_mul_i32 s{T[0]}, s{S_W}, {36*stride}
        s_add_u32 s{T[0]}, s{T[0]}, {16*stride}
        s_add_u32 s{T[0]}, s{T[0]}, s{S_A}""")
        dma(A,t2,wg,4,T[1],4096,T[0],144*stride)
    trlane(A,t0,t1,t2)
    A(f"""v_xor_b32 v{t3}, s{S_W}, v{t1}
    v_lshlrev_b32 v{t3}, 6, v{t3}
    v_lshl_add_u32 v{t3}, v{t0}, 5, v{t3}
    v_lshl_add_u32 v{t3}, v{t2}, 3, v{t3}
    v_lshl_add_u32 v{t3}, v{t1}, 8, v{t3}
    v_lshl_add_u32 v{t3}, v{G2}, 11, v{t3}""")
    bar(A,vm=0)
    for k in range(36):
        for hh in range(2): A(f"ds_read_b64_tr_b16 {a(4*k+2*hh,2)}, v{t3} offset:{(k%16)*4096+hh*1024}")
        if k%16==15: A(f"v_add_u32 v{t3}, 0x10000, v{t3}")
    bar(A)
def w0(A,f):
    l=A.lab('w0'); A(f"s_cmp_lg_u32 s{S_W}, 0\ns_cbranch_scc1 {l}"); f(); A(f"{l}:")
def nextlayer(A,lab): A(f"s_add_u32 s{S_L}, s{S_L}, 1\ns_mov_b32 s{S_LB}, {LB[1]}\ns_cmp_lt_u32 s{S_L}, 2\ns_cbranch_scc1 {lab}")
def xsrd(A,d,off): A(f"s_add_u32 s{T[0]}, s{S_LB}, {off}\ns_add_u32 s{d}, s{P_WS}, s{T[0]}\ns_addc_u32 s{d+1}, s{P_WS+1}, 0")
def a1(A,cfg,st):
    W=lambda t,k:(a((t*36+k)*4,4) if t*36+k<64 else v(224+(t*36+k-64)*4,4))
    W2=lambda t,k,hh:(a((t*36+k)*4+2*hh,2) if t*36+k<64 else v(224+(t*36+k-64)*4+2*hh,2))
    D1=164;D2=180;KV=196;PA1,PA2,CL,CA,CB,CC=12,13,14,15,16,17
    A(f"s_lshr_b32 s{S_SEG}, s{S_WT}, 3\ns_mov_b32 s{S_STEP}, 24"); ldx(A,S_SEG)
    A(f"""s_and_b32 s{S_A}, s{S_WT}, 7
    s_and_b32 s{S_B}, s{S_W}, 1
    s_lshl_b32 s{S_B}, s{S_B}, 1
    v_add_u32 v{t0}, s{S_B}, v{G2}
    v_lshlrev_b32 v{t0}, 2, v{t0}
    v_xor_b32 v{t0}, v{t0}, v{C32}
    v_min_u32 v{t0}, 26, v{t0}
    v_mul_u32_u24 v{t1}, 57, v{t0}
    v_lshrrev_b32 v{t1}, 9, v{t1}
    v_mul_u32_u24 v{t1}, {1152-144}, v{t1}
    v_lshl_add_u32 v{t1}, v{t0}, 4, v{t1}
    v_mul_u32_u24 v{t0}, 3456, v{G2}
    v_add_u32 v18, v{t0}, v{t1}
    s_mul_i32 s{S_C}, s{S_A}, 144
    s_mul_i32 s{T[0]}, s{S_W}, {2*3456}
    s_add_u32 s{S_C}, s{S_C}, s{T[0]}
    s_mul_i32 s{S_D}, s{S_W}, 18
    s_sub_u32 s{T[2]}, s{S_D}, s{S_B}
    s_lshl_b32 s{T[2]}, s{T[2]}, 1""")
    trlane(A,t0,t1,t2)
    A(f"v_lshl_add_u32 v{t0}, v{t0}, 2, v{t2}\nv_cmp_gt_u32 vcc, 5, v{t0}")
    for t,(lo,hi,d) in enumerate(((144,-40,PA1),(288,-16,PA2))):
        A(f"""v_mov_b32 v{t2}, {hi}
        v_mov_b32 v{t3}, {lo}
        v_cndmask_b32 v{t2}, v{t2}, v{t3}, vcc
        v_min_u32 v{t3}, {7-t}, v{t0}
        v_lshl_add_u32 v{t2}, v{t3}, 3, v{t2}
        v_add_u32 v{t2}, s{T[2]}, v{t2}
        v_lshlrev_b32 v{t3}, 6, v{t1}
        v_xor_b32 v{t2}, v{t2}, v{t3}
        v_lshl_add_u32 v{t2}, v{t1}, 9, v{t2}
        v_lshl_add_u32 v{d}, v{G2}, 12, v{t2}""")
    for rd in range(2):
        A(f"s_lshl_b32 s{T[1]}, s{S_W}, 10"); dma(A,18,wg,36,T[1],4096,S_C,8*3456)
        A(f"v_mov_b32 v{t0}, v{PA1}\nv_mov_b32 v{t1}, v{PA2}"); bar(A,vm=0)
        for k in range(18):
            for t in range(2):
                for hh in range(2): A(f"ds_read_b64_tr_b16 {W2(t,rd*18+k,hh)}, v{t0+t} offset:{(k%8)*8192+hh*2048}")
            if k%8==7: A(f"v_add_u32 v{t0}, 0x10000, v{t0}\nv_add_u32 v{t1}, 0x10000, v{t1}")
        bar(A)
    st(1)
    A(f"""s_mul_i32 s{T[0]}, s{S_A}, 72
    s_add_u32 s{S_D}, s{S_D}, s{T[0]}
    v_mov_b32 v{t3}, {OOB}
    v_subrev_u32 v{t0}, s{S_B}, v{C32}
    v_add_u32 v{t1}, s{S_D}, v{t0}
    v_lshlrev_b32 v{t1}, 6, v{t1}
    v_lshl_add_u32 v{t1}, v{G2}, 5, v{t1}
    v_add_u32 v{PA1}, {-20*64}, v{t1}
    v_cmp_le_i32 vcc, 20, v{t0}
    v_cndmask_b32 v{PA1}, v{t3}, v{PA1}, vcc
    v_add_u32 v{PA2}, {-8*64}, v{t1}
    v_cmp_gt_i32 vcc, 26, v{t0}
    v_cndmask_b32 v{PA2}, v{t3}, v{PA2}, vcc
    v_cmp_le_u32 vcc, 20, v{C32}
    v_cndmask_b32 v{PA2}, v{t3}, v{PA2}, vcc
    v_mov_b32 v{t2}, 0xff800000
    v_cndmask_b32 v{CL}, v{t2}, 0, vcc
    v_cndmask_b32 v{CB}, 0, 1.0, vcc
    v_mov_b32 v{t2}, 0x358637bd
    v_cndmask_b32 v{CC}, 0, v{t2}, vcc
    v_cmp_le_u32 vcc, 28, v{C32}
    v_cndmask_b32 v{CA}, 1.0, 0, vcc
    v_cndmask_b32 v{CB}, v{CB}, 0, vcc
    v_cndmask_b32 v{CC}, v{CC}, 1.0, vcc
    v_min_u32 v{FLV}, 17, v0
    v_lshlrev_b32 v{FLV}, 6, v{FLV}
    s_mov_b32 s{S_E}, 0x3fb8aa3b
    s_mov_b32 s{S_F}, 0x358637bd
    A1_LAYER:""")
    for i in range(0,16,2): A(f"v_mov_b64 {v(KV+i,2)}, 0")
    A("A1_LOOP:"); A.wait(vm=0); ln(A); tile_write(A); bar(A)
    A(f"s_add_u32 s{S_C}, s{S_SEG}, s{S_STEP}\ns_cmp_lt_u32 s{S_C}, 64\ns_cselect_b32 s{T[1]}, s{S_L}, 1\ns_cmp_lg_u32 s{T[1]}, 0\ns_cbranch_scc1 A1_NP"); ldx(A,S_C); A("A1_NP:")
    gemm(A,lambda k,f:(mf(A,D1,f,W(0,k),v(D1,16) if k else 0),mf(A,D2,f,W(1,k),v(D2,16) if k else 0)))
    A(f"s_mul_i32 s{T[0]}, s{S_SEG}, 36864\ns_add_u32 s{T[0]}, s{T[0]}, s{S_LB}")
    for t,D,PA in ((0,D1,PA1),(1,D2,PA2)):
        for i in range(0,16,2):
            for j in range(2): A(f"v_mul_f32 v{t0+j}, s{S_E}, v{D+i+j}\nv_min_f32 v{t0+j}, 0, v{t0+j}\nv_exp_f32 v{t0+j}, v{t0+j}")
            for j in range(2):
                x=D+i+j
                if t==0: A(f"v_max_f32 v{x}, 0, v{x}\nv_add_f32 v{x}, v{x}, v{t0+j}\nv_add_f32 v{x}, s{S_F}, v{x}")
                else: A(f"v_max_f32 v{x}, v{CL}, v{x}\nv_fma_f32 v{t0+j}, v{t0+j}, v{CB}, v{CC}\nv_fma_f32 v{x}, v{x}, v{CA}, v{t0+j}")
            A(f"v_cvt_pk_bf16_f32 v{FF+8*t+i//2}, v{D+i}, v{D+i+1}")
        for j in range(2): A(f"buffer_store_dwordx4 {v(FF+8*t+4*j,4)}, v{PA}, {ws}, s{T[0]} offen offset:{16*j} sc1")
    for j in range(2): mf(A,KV,v(FF+4*j,4),v(FF+8+4*j,4),v(KV,16))
    A(f"s_mov_b32 s{S_SEG}, s{S_C}\ns_cmp_ge_u32 s{S_SEG}, 64\ns_cbranch_scc1 A1_DONE\ns_cmp_eq_u32 s{S_L}, 0\ns_cbranch_scc1 A1_LOOP\nA1_FETCH:")
    A(f"s_and_b32 s{T[1]}, s{S_SEG}, 3\ns_mul_i32 s{T[1]}, s{T[1]}, {18*FS}\ns_add_u32 s{T[1]}, s{T[1]}, {F_OUT*FS}\ns_add_u32 s{S_TG}, s{S_SEG}, 1")
    poll_ge(A,WS,FLV,f"s{T[1]}",f"s{S_TG}",t0,10); ldx(A,S_SEG); A("s_branch A1_LOOP\nA1_DONE:")
    st(2); wait_dbg(A,D_READY,NREADY,t0,t1,11)
    B,V01,V89,VAB=FF+20,FF+21,FF+22,FF+23
    A(f"""v_mov_b32 v{t3}, {OOB}
    v_subrev_u32 v{t0}, s{S_B}, v{C32}
    v_cmp_eq_u32 vcc, 28, v{C32}
    v_cndmask_b32 v{t1}, v{t0}, 18, vcc
    v_lshlrev_b32 v{B}, 7, v{t1}
    v_lshl_add_u32 v{B}, v{G2}, 4, v{B}
    v_cndmask_b32 v{t0}, v{t0}, 0, vcc
    v_cmp_gt_u32 vcc, 18, v{t0}
    v_cndmask_b32 v{B}, v{t3}, v{B}, vcc
    v_cndmask_b32 v{V89}, v{B}, v{t3}, s[{MHI}:{MHI+1}]
    v_cndmask_b32 v{V01}, v{t3}, v{B}, s[{MHI}:{MHI+1}]
    s_cmp_eq_u32 s{S_B}, 0
    s_cselect_b64 vcc, -1, 0
    v_cndmask_b32 v{V01}, v{V01}, v{B}, vcc
    v_cndmask_b32 v{VAB}, v{V89}, v{t3}, vcc
    s_lshl_b32 s{T[0]}, s{S_A}, 2
    s_add_u32 s{T[0]}, s{T[0]}, s{S_W}
    s_mul_i32 s{T[0]}, s{T[0]}, {KVH}
    s_mul_i32 s{T[1]}, s{S_L}, {KVL}
    s_add_u32 s{T[0]}, s{T[0]}, s{T[1]}
    s_lshl_b32 s{T[1]}, s{S_B}, 2
    s_sub_u32 s{T[0]}, s{T[0]}, s{T[1]}
    s_add_u32 s{T[0]}, s{T[0]}, {KVB}""")
    for r_ in range(12):
        va=V01 if r_<2 else B if r_<8 else V89 if r_<10 else VAB
        A(f"buffer_atomic_add_f32 v{KV+r_}, v{va}, {ws}, s{T[0]} offen offset:{(8*(r_>>2)+(r_&3))*4} sc1")
    bar(A,vm=0)
    A(f"s_lshl_b32 s{T[0]}, s{S_L}, 6\ns_add_u32 s{T[0]}, s{T[0]}, {D_KV[0]}"); w0(A,lambda:dbg_add(A,f"s{T[0]}",t0,t1))
    st(3)
    A(f"s_cmp_lt_u32 s{S_WT}, 96\ns_cbranch_scc1 R_QKV\ns_cmp_lt_u32 s{S_WT}, 168\ns_cbranch_scc1 R_OUT\ns_cmp_eq_u32 s{S_L}, 1\ns_cbranch_scc1 W_END")
    A(f"s_mov_b32 s{S_L}, 1\ns_mov_b32 s{S_LB}, {LB[1]}\ns_sub_u32 s{S_SEG}, s{S_WT}, 168\ns_lshr_b32 s{S_SEG}, s{S_SEG}, 3\ns_mov_b32 s{S_STEP}, 3")
    srd(A,XS,P_WS,2048*1152,X2)
    for i in range(0,16,2): A(f"v_mov_b64 {v(KV+i,2)}, 0")
    A("s_branch A1_FETCH")
def qkv(A,cfg,st):
    D=164
    A(f"""R_QKV:
    s_lshr_b32 s{S_B}, s{S_WT}, 5
    s_and_b32 s{S_C}, s{S_WT}, 31
    s_lshl_b32 s{S_A}, s{S_C}, 8
    s_cmp_eq_u32 s{S_B}, 0
    s_cselect_b32 s{WG}, s{P_BQ}, s{P_BK}
    s_cselect_b32 s{WG+1}, s{P_BQ+1}, s{P_BK+1}
    s_cmp_eq_u32 s{S_B}, 2
    s_cselect_b32 s{WG}, s{P_BV}, s{WG}
    s_cselect_b32 s{WG+1}, s{P_BV+1}, s{WG+1}
    s_mov_b32 s{WG+2}, {576*8192}
    s_add_u32 s{S_FL}, s{S_WT}, {F_QKV}
    s_lshl_b32 s{S_FL}, s{S_FL}, 6
    v_min_u32 v{FLV}, 4, v0
    v_lshlrev_b32 v{FLV}, 6, v{FLV}""")
    wload128(A,8192,16,False); st(4)
    def fetch(seg):
        A(f"s_and_b32 s{T[1]}, s{seg}, 3\ns_mul_i32 s{T[1]}, s{T[1]}, {5*FS}"); target(A,seg); poll_ge(A,WS,FLV,f"s{T[1]}",f"s{S_TG}",t0,20); ldx(A,seg)
    A(f"""Q_LAYER:
    s_mov_b32 s{S_SEG}, 0
    s_lshl_b32 s{S_PROG}, s{S_L}, 6
    s_lshl_b32 s{S_D}, s{S_B}, 24
    s_lshl_b32 s{T[0]}, s{S_C}, 13
    s_add_u32 s{S_D}, s{S_D}, s{T[0]}
    s_lshl_b32 s{T[0]}, s{S_W}, 11
    s_add_u32 s{S_D}, s{S_D}, s{T[0]}
    s_add_u32 s{S_D}, s{S_D}, s{S_LB}
    s_add_u32 s{S_D}, s{S_D}, {QB}"""); xsrd(A,XS,X1); fetch(S_SEG); A.wait(vm=0); st(5)
    A("Q_LOOP:"); A.wait(vm=2); ln(A); tile_write(A); bar(A,vm=0)
    w0(A,lambda:publish(A,S_FL,S_PROG,t0,t1))
    A(f"s_add_u32 s{S_SEG}, s{S_SEG}, 1\ns_cmp_ge_u32 s{S_SEG}, 64\ns_cbranch_scc1 Q_NP"); fetch(S_SEG)
    A(f"Q_NP:\ns_cmp_eq_u32 s{S_B}, 2\ns_cbranch_scc1 Q_V")
    gemm(A,lambda k,f:mf(A,D,a(4*k,4),f,v(D,16) if k else 0)); A("s_branch Q_E\nQ_V:")
    gemm(A,lambda k,f:mf(A,D,f,a(4*k,4),v(D,16) if k else 0)); A("Q_E:\ns_nop 11")
    for i in range(8): A(f"v_cvt_pk_bf16_f32 v{D+16+i}, v{D+2*i}, v{D+2*i+1}")
    for j in range(2): A(f"buffer_store_dwordx4 {v(D+16+4*j,4)}, v{L16}, {ws}, s{S_D} offen offset:{1024*j} sc1")
    A(f"s_add_u32 s{S_D}, s{S_D}, {32*8192}\ns_add_u32 s{S_PROG}, s{S_PROG}, 1\ns_cmp_lt_u32 s{S_SEG}, 64\ns_cbranch_scc1 Q_LOOP")
    bar(A,vm=0); w0(A,lambda:publish(A,S_FL,S_PROG,t0,t1)); st(6); nextlayer(A,"Q_LAYER"); A("s_branch W_END")
def resid(A,d,x):
    for i in range(2):
        A(f"v_lshlrev_b32 v{t0}, 16, v{x+i}\nv_and_b32 v{t1}, 0xffff0000, v{x+i}\nv_add_f32 v{t0}, v{t0}, v{d+2*i}\nv_add_f32 v{t1}, v{t1}, v{d+2*i+1}\nv_cvt_pk_bf16_f32 v{x+i}, v{t0}, v{t1}")
def out(A,cfg,st):
    D=20;RS=36;RA=12;FR=40;NB=52
    A(f"""R_OUT:
    s_sub_u32 s{S_A}, s{S_WT}, 96
    s_add_u32 s{S_FL}, s{S_A}, {F_OUT}
    s_lshl_b32 s{S_FL}, s{S_FL}, 6
    s_mul_i32 s{S_B}, s{S_A}, 57
    s_lshr_b32 s{S_B}, s{S_B}, 10
    s_mul_i32 s{T[0]}, s{S_B}, 18
    s_sub_u32 s{S_A}, s{S_A}, s{T[0]}
    s_lshl_b32 s{S_A}, s{S_A}, 6"""); srd(A,WG,P_BO,32*147456); trlane(A,t0,t1,t2)
    A(f"""v_lshl_add_u32 v{t3}, v{G2}, 2, v{t1}
    v_lshl_add_u32 v{t3}, v{t0}, 3, v{t3}
    v_mul_u32_u24 v{t3}, 1152, v{t3}
    v_lshl_add_u32 v{t3}, v{t2}, 4, v{t3}
    v_lshlrev_b32 v{t2}, 3, v{t2}
    v_lshl_add_u32 v{t2}, v{t0}, 5, v{t2}
    v_lshl_add_u32 v{t2}, v{t1}, 6, v{t2}
    v_lshl_add_u32 v{t2}, v{G2}, 9, v{t2}
    s_lshl_b32 s{T[2]}, s{S_W}, 15
    v_add_u32 v{t2}, s{T[2]}, v{t2}
    s_mul_i32 s{T[0]}, s{S_W}, {1024*1152}
    s_add_u32 s{T[0]}, s{T[0]}, s{S_A}"""); bar(A)
    for rd in range(2):
        A(f"s_mov_b32 s{T[1]}, s{T[2]}"); dma(A,t3,wg,32,T[1],1024,T[0],16*1152); A.wait(vm=0)
        for k in range(32):
            for hh in range(2): A(f"ds_read_b64_tr_b16 {a(4*(rd*32+k)+2*hh,2)}, v{t2} offset:{k*1024+hh*256}")
        A.wait(lg=0)
    A(f"""v_mul_u32_u24 v{RA}, 1152, v{C32}
    v_lshl_add_u32 v{RA}, v{G2}, 3, v{RA}
    s_lshl_b32 s{T[0]}, s{S_W}, 4
    s_add_u32 s{T[0]}, s{T[0]}, s{S_A}
    v_add_u32 v{RA}, s{T[0]}, v{RA}
    v_and_b32 v{FLV}, 7, v0
    s_lshl_b32 s{T[0]}, s{S_W}, 3
    v_add_u32 v{FLV}, s{T[0]}, v{FLV}
    v_lshlrev_b32 v{FLV}, 6, v{FLV}
    s_lshl_b32 s{T[0]}, s{S_W}, 12
    v_add_u32 v13, s{T[0]}, v{L16}
    s_lshl_b32 s{T[0]}, s{S_W}, 10
    v_add_u32 v14, s{T[0]}, v{L16}"""); bar(A); st(4)
    srd(A,XD,P_WS,2048*1152,X2)
    A(f"O_LAYER:\ns_mov_b32 s{S_SEG}, s{S_B}"); xsrd(A,XS,X1)
    A(f"""O_LOOP:
    s_mul_i32 s{T[1]}, s{S_SEG}, 43
    s_lshr_b32 s{T[1]}, s{T[1]}, 7
    s_mul_i32 s{T[1]}, s{T[1]}, 3
    s_sub_u32 s{T[1]}, s{S_SEG}, s{T[1]}
    s_mul_i32 s{T[1]}, s{T[1]}, {32*FS}
    s_add_u32 s{T[1]}, s{T[1]}, {F_ATT*FS}"""); target(A,S_SEG); poll_ge(A,WS,FLV,f"s{T[1]}",f"s{S_TG}",t0,30); st(5)
    A(f"""s_lshl_b32 s{S_C}, s{S_SEG}, 18
    s_lshl_b32 s{T[0]}, s{S_W}, 16
    s_add_u32 s{S_C}, s{S_C}, s{T[0]}
    s_add_u32 s{S_C}, s{S_C}, s{S_LB}
    s_add_u32 s{S_C}, s{S_C}, {OB}
    s_mul_i32 s{S_D}, s{S_SEG}, 36864""")
    def ld(n):
        A(f"buffer_load_dwordx4 {v(FR+4*(n%NB),4)}, v{L16}, {ws}, s{S_C} offen offset:{(n&3)*1024} sc1")
        if n&3==3: A(f"s_add_u32 s{S_C}, s{S_C}, 4096")
    for n in range(NB): ld(n)
    for n in range(64):
        mf(A,D,a(4*n,4),v(FR+4*(n%NB),4),v(D,16) if n else 0)
        if n+NB<64: ld(n+NB)
        if n+NB==64: A(f"buffer_load_dwordx2 {v(RS,2)}, v{RA}, {xs}, s{S_D} offen sc1")
    for q in range(4): A(f"ds_write_b128 v13, {v(D+4*q,4)} offset:{q*1024}")
    bar(A)
    for q in range(4): A(f"ds_read_b128 {v(D+4*q,4)}, v14 offset:{q*4096}")
    for i in (0,2): A(f"v_pk_add_f32 {v(D+i,2)}, {v(D+i,2)}, {v(D+4+i,2)}\nv_pk_add_f32 {v(D+8+i,2)}, {v(D+8+i,2)}, {v(D+12+i,2)}\nv_pk_add_f32 {v(D+i,2)}, {v(D+i,2)}, {v(D+8+i,2)}")
    resid(A,D,RS)
    A(f"buffer_store_dwordx2 {v(RS,2)}, v{RA}, {xd}, s{S_D} offen sc1"); bar(A,vm=0)
    w0(A,lambda:publish(A,S_FL,S_TG,t0,t1)); st(6)
    A(f"s_add_u32 s{S_SEG}, s{S_SEG}, 4\ns_cmp_lt_u32 s{S_SEG}, 64\ns_cbranch_scc1 O_LOOP")
    srd(A,XD,P_OUT,2048*1152); nextlayer(A,"O_LAYER"); A("s_branch W_END")
def workers(A,cfg):
    from att import att
    st=Stamp(A,cfg.get('stamp'),real=True)
    setup(A); st.init()
    A(f"s_cmp_ge_u32 s{S_WT}, 216\ns_cbranch_scc1 END\ns_cmp_ge_u32 s{S_WT}, 192\ns_cbranch_scc1 R_ATT")
    a1(A,cfg,st); qkv(A,cfg,st); out(A,cfg,st); att(A,cfg,st)
    A("W_END:"); st.dump(t0,t1)
```

```python
import sys, json
from common import *
import chain
NAME="interleave_layers__linear_attn_block__memory_aug_recurrent_mem_tr__prompt"
def build(cfg):
    A=Asm(); prologue(A,cfg)
    A(f"s_cmp_ge_u32 s{S_ROLE}, 32\ns_cbranch_scc1 WORKER")
    chain.chain(A,cfg)
    A("WORKER:")
    if not cfg.get('only_chain'):
        import workers; workers.workers(A,cfg)
    A("s_branch END"); epilogue(A)
    ref=open(f"cdna_kernels/{NAME}.s.ref").read().split('\n')
    head=[l for l in ref if l.startswith(';') and '@launch' not in l]
    return "\n".join(head)+f"""
; @launch grid=(256,1,1) block=(256,1,1) lds=163840
.amdgcn_target "amdgcn-amd-amdhsa--gfx950"
.text
.globl {NAME}_kernel
.p2align 8
.type {NAME}_kernel,@function
{NAME}_kernel:
{A.text()}.section .rodata,"a"
.p2align 6
.amdhsa_kernel {NAME}_kernel
  .amdhsa_next_free_vgpr 512
  .amdhsa_next_free_sgpr 102
  .amdhsa_accum_offset 256
  .amdhsa_group_segment_fixed_size 0
  .amdhsa_kernarg_size 104
  .amdhsa_user_sgpr_count 2
  .amdhsa_user_sgpr_kernarg_segment_ptr 1
  .amdhsa_system_sgpr_workgroup_id_x 1
.end_amdhsa_kernel
"""
if __name__=="__main__":
    cfg={k:1 for k in sys.argv[2:]}
    open(sys.argv[1],"w").write(build(cfg))
```

```python
from common import *
import workers as wk
from workers import *
LPQ=38016; LKV=74880
m8=lambda A,d,x,y,c: A(f"v_mfma_f32_32x32x8bf16_1k {v(d,16)}, {x}, {y}, {c}")
def a2(A,cfg,st):
    KVA=20;PB=68;DH=116;D=160;RS=244;LF=252;RA,PR0,PR1,TL=12,13,14,15
    A(f"s_cmp_ge_u32 s{S_WT}, 212\ns_cbranch_scc1 A2_DONE")
    trlane(A,t0,t1,t2)
    A(f"""v_and_b32 v{t3}, 1, v{t2}
    v_lshlrev_b32 v{t3}, 5, v{t3}
    v_lshl_add_u32 v{t3}, v{t0}, 4, v{t3}
    v_lshrrev_b32 v{t2}, 1, v{t2}
    v_lshl_add_u32 v{t3}, v{t2}, 3, v{t3}
    s_mul_i32 s{S_E}, s{S_W}, 9216
    s_add_u32 s{T[0]}, s{S_E}, {LPQ}
    v_add_u32 v{t3}, s{T[0]}, v{t3}
    v_lshl_add_u32 v{PR0}, v{t1}, 6, v{t3}
    v_lshl_add_u32 v{PR0}, v{G2}, 9, v{PR0}
    v_and_b32 v{t1}, 1, v{t1}
    v_lshl_add_u32 v{PR1}, v{t1}, 6, v{t3}
    s_mul_i32 s{T[0]}, s{S_W}, {8*1056}
    v_add_u32 v{TW}, s{T[0]}, v{TR}
    s_mul_i32 s{T[0]}, s{S_W}, 1056
    v_add_u32 v{TL}, s{T[0]}, v{TR}
    s_lshl_b32 s{T[0]}, s{S_W}, 6
    s_add_u32 s{T[0]}, s{T[0]}, s{S_A}
    s_cmp_lt_u32 s{T[0]}, 1152
    s_cselect_b32 s{T[0]}, s{T[0]}, {OOB}
    v_mul_u32_u24 v{RA}, 1152, v{C32}
    v_lshl_add_u32 v{RA}, v{G2}, 4, v{RA}
    v_add_u32 v{RA}, s{T[0]}, v{RA}
    v_and_b32 v{t0}, 1, v0
    v_add_u32 v{t0}, 16, v{t0}
    v_and_b32 v{t1}, 2, v0
    v_cmp_eq_u32 vcc, 0, v{t1}
    v_cndmask_b32 v{t0}, 18, v{t0}, vcc
    v_cmp_gt_u32 vcc, 16, v{C32}
    v_cndmask_b32 v{t0}, v{t0}, v{C32}, vcc
    v_lshlrev_b32 v{t1}, 1, v{G2}
    v_xor_b32 v{t1}, v{t1}, v{t0}
    v_and_b32 v{t1}, 7, v{t1}
    v_lshlrev_b32 v{t1}, 4, v{t1}
    v_lshl_add_u32 v{t1}, v{t0}, 7, v{t1}
    s_mul_i32 s{S_F}, s{S_W}, {8*KVH}
    s_add_u32 s{T[0]}, s{S_F}, {LKV}
    v_add_u32 v16, s{T[0]}, v{t1}
    v_xor_b32 v17, 16, v16
    v_xor_b32 v18, 64, v16
    v_xor_b32 v19, 16, v18
    v_lshrrev_b32 v{t0}, 3, v0
    v_lshlrev_b32 v{t0}, 4, v{t0}
    v_xor_b32 v{FLV}, v{t0}, v{L16}
    s_sub_u32 s{S_FL}, s{S_WT}, {192-F_A2}
    s_lshl_b32 s{S_FL}, s{S_FL}, 6
    s_mov_b32 s{S_SEG}, s{S_B}
    s_cmp_eq_u32 s{S_L}, 0
    s_cselect_b32 s{S_TG}, 192, 24
    s_lshl_b32 s{T[1]}, s{S_L}, 6
    s_add_u32 s{T[1]}, s{T[1]}, {D_KV[0]}"""); xsrd(A,XD,X1)
    w0(A,lambda:wait_dbg(A,f"s{T[1]}",f"s{S_TG}",t0,t1,40)); bar(A); st(1); st.mark(0)
    def pq(seg):
        A(f"s_mul_i32 s{T[0]}, s{seg}, 36864\ns_add_u32 s{T[0]}, s{T[0]}, s{S_E}\ns_add_u32 s{T[0]}, s{T[0]}, s{S_LB}\ns_add_u32 s{T[1]}, s{S_E}, {LPQ}")
        dma(A,L16,ws,9,T[1],1024,T[0],1024,'sc1')
    A(f"s_mul_i32 s{T[1]}, s{S_L}, {KVL}\ns_add_u32 s{T[2]}, s{S_F}, s{T[1]}\ns_add_u32 s{T[2]}, s{T[2]}, {KVB}\ns_add_u32 s{T[3]}, s{S_F}, {LKV}")
    dma(A,FLV,ws,20,T[3],1024,T[2],1024,'sc1'); pq(S_SEG); A.wait(vm=9)
    for h in range(8):
        b=DH+10*h; o=2*(h&1)
        A(f"ds_read_b128 {v(b,4)}, v{16+o} offset:{h*KVH}\nds_read_b128 {v(b+4,4)}, v{17+o} offset:{h*KVH}\nds_read_b64 {v(b+8,2)}, v{18-o} offset:{h*KVH}")
    for h in range(8):
        for i in range(5): A(f"v_cvt_pk_bf16_f32 v{KVA+6*h+i}, v{DH+10*h+2*i}, v{DH+10*h+2*i+1}")
        A(f"v_mov_b32 v{KVA+6*h+5}, 0")
    A.wait(vm=0); st.mark(2)
    A("A2_LOOP:")
    for h in range(8):
        for x in range(2): A(f"ds_read_b64_tr_b16 {v(PB+6*h+2*x,2)}, v{PR0} offset:{(18*h+4*x)*64}")
        A(f"ds_read_b64_tr_b16 {v(PB+6*h+4,2)}, v{PR1} offset:{(18*h+16)*64}")
    A(f"s_mul_i32 s{S_D}, s{S_SEG}, 36864")
    for q in range(2): A(f"buffer_load_dwordx4 {v(RS+4*q,4)}, v{RA}, {xs}, s{S_D} offen offset:{32*q} sc1")
    def epi(h):
        d=DH+16*h
        A(f"v_add_f32 v{d+10}, 0x358637bd, v{d+10}\nv_rcp_f32 v{d+10}, v{d+10}")
        for i in range(5): A(f"v_pk_mul_f32 {v(d+2*i,2)}, {v(d+2*i,2)}, {v(d+10,2)} op_sel_hi:[1,0]")
        for i in range(4): A(f"v_cvt_pk_bf16_f32 v{d+i}, v{d+2*i}, v{d+2*i+1}")
        A(f"ds_write_b128 v{TW}, {v(d,4)} offset:{h*1056}")
        if h<4: A(f"v_cvt_pk_bf16_f32 v{LF+h}, v{d+8}, v{d+9}")
        else: A(f"v_cvt_pk_bf16_f32 v{d+8}, v{d+8}, v{d+9}\nv_cndmask_b32 v{LF+h-4}, v{LF+h-4}, v{d+8}, s[{MHI}:{MHI+1}]")
    for h in range(10):
        if h<8: mf(A,DH+16*h,v(KVA+6*h,4),v(PB+6*h,4),0)
        if 1<=h<9: m8(A,DH+16*h-16,v(KVA+6*h-2,2),v(PB+6*h-2,2),v(DH+16*h-16,16))
        if h>=2: epi(h-2)
    A(f"ds_write_b128 v{TL}, {v(LF,4)} offset:{32*1056}")
    target(A,S_SEG); A(f"s_add_u32 s{S_SEG}, s{S_SEG}, 4\ns_min_u32 s{S_C}, s{S_SEG}, 63"); bar(A)
    sw=lambda q: A(f"v_permlane32_swap_b32 v{RS+4*q}, v{RS+4*q+2}\nv_permlane32_swap_b32 v{RS+4*q+1}, v{RS+4*q+3}")
    pq(S_C)
    gemm(A,lambda k,f:mf(A,D,a(4*k,4),f,v(D,16) if k else 0))
    for q in range(2):
        sw(q); resid(A,D+8*q,RS+4*q); resid(A,D+8*q+4,RS+4*q+2); sw(q); A(f"buffer_store_dwordx4 {v(RS+4*q,4)}, v{RA}, {xd}, s{S_D} offen offset:{32*q} sc1")
    bar(A,vm=0); w0(A,lambda:publish(A,S_FL,S_TG,t0,t1)); st.mark(1,True)
    A(f"s_cmp_lt_u32 s{S_SEG}, 64\ns_cbranch_scc1 A2_LOOP\nA2_DONE:"); st(2)
def attn(A,cfg,st):
    Q=20;K=52;V=84;KMR=116;VMR=148;S=156;SM=172;MK=188;O=[204,220,236,20];KA,VA,ZR=12,13,14;M=16;M2=17;SU=18
    A(f"""s_sub_u32 s{T[0]}, s{S_WT}, 192
    s_lshr_b32 s{S_SEG}, s{T[0]}, 3
    s_lshl_b32 s{T[0]}, s{T[0]}, 2
    s_add_u32 s{T[0]}, s{T[0]}, s{S_W}
    s_add_u32 s{S_FL}, s{T[0]}, {F_ATT}
    s_lshl_b32 s{S_FL}, s{S_FL}, 6
    s_and_b32 s{S_C}, s{T[0]}, 31
    s_mov_b32 s{S_E}, 0x3e0293ee
    v_and_b32 v15, 1, v0
    v_lshlrev_b32 v15, 8, v15
    v_lshl_add_u32 v15, v{G2}, 9, v15
    v_bfe_u32 v{t0}, v0, 1, 4
    v_lshl_add_u32 v15, v{t0}, 4, v15
    v_min_u32 v{FLV}, 2, v0
    v_lshlrev_b32 v{FLV}, 11, v{FLV}
    v_and_b32 v{KA}, 7, v0
    v_lshlrev_b32 v{KA}, 4, v{KA}
    v_lshl_add_u32 v{KA}, v{G2}, 7, v{KA}
    v_lshlrev_b32 v{VA}, 2, v{C32}
    v_lshl_add_u32 v{VA}, v{G2}, 8, v{VA}
    v_mov_b32 v{ZR}, {96*FS}
    v_lshlrev_b32 v{t0}, 2, v{G2}
    v_sub_u32 v{t0}, v{C32}, v{t0}
    v_mov_b32 v{t1}, 0xff800000""")
    for i in range(16): A(f"v_cmp_le_i32 vcc, {8*(i>>2)+(i&3)}, v{t0}\nv_cndmask_b32 v{MK+i}, v{t1}, 0, vcc")
    A(f"AT_LOOP:\ns_add_u32 s{S_STEP}, s{S_C}, {F_QKV}\ns_lshl_b32 s{S_STEP}, s{S_STEP}, 6"); target(A,S_SEG)
    poll_ge(A,WS,FLV,f"s{S_STEP}",f"s{S_TG}",t0,41); st(3)
    A(f"""s_lshl_b32 s{S_D}, s{S_SEG}, 5
    s_add_u32 s{S_D}, s{S_D}, s{S_C}
    s_lshl_b32 s{S_PROG}, s{S_D}, 11
    s_add_u32 s{S_PROG}, s{S_PROG}, s{S_LB}
    s_lshl_b32 s{S_D}, s{S_D}, 13
    s_add_u32 s{S_D}, s{S_D}, s{S_LB}""")
    for n,(off,R) in enumerate(((QB,Q),(KB,K),(QB+4096,Q+16),(KB+4096,K+16),(VB,V),(VB+4096,V+16))):
        A(f"s_add_u32 s{T[n]}, s{S_D}, {off}")
        for i in range(4): A(f"buffer_load_dwordx4 {v(R+4*i,4)}, v{15 if n>3 else L16}, {ws}, s{T[n]} offen offset:{1024*i} sc1")
    for k in range(8): mf(A,S,v(K+4*k,4),v(Q+4*k,4),v(S if k else MK,16))
    A(f"v_max3_f32 v{M}, v{S}, v{S+1}, v{S+2}")
    for i in range(3,15,2): A(f"v_max3_f32 v{M}, v{M}, v{S+i}, v{S+i+1}")
    A.forget(); st(4); poll_ge(A,WS,ZR,f"s{S_STEP}",f"s{S_TG}",t0,42,sleep=1); st(5); st.mark(3)
    A(f"s_add_u32 s{T[0]}, s{S_PROG}, {KM}\ns_add_u32 s{T[1]}, s{S_PROG}, {VM}\ns_add_u32 s{T[2]}, s{S_D}, {OB}\ns_add_u32 s{T[3]}, s{S_D}, {OB+4096}")
    for k in range(8): A(f"buffer_load_dwordx4 {v(KMR+4*k,4)}, v{KA}, {ws}, s{T[0]} offen offset:{256*k} sc1")
    for k in range(8): A(f"buffer_load_dword v{VMR+k}, v{VA}, {ws}, s{T[1]} offen offset:{512*(k>>1)+128*(k&1)} sc1")
    for k in range(8): mf(A,SM,v(KMR+4*k,4),v(Q+4*k,4),v(SM,16) if k else 0)
    A(f"""v_max3_f32 v{M}, v{M}, v{S+15}, v{SM}
    v_max3_f32 v{M}, v{M}, v{SM+1}, v{SM+2}
    v_max_f32 v{M2}, v{M}, v{SM+3}
    v_max_f32 v{M}, v{M}, v{SM+3}
    v_permlane32_swap_b32 v{M}, v{M2}
    v_max_f32 v{M}, v{M}, v{M2}
    v_mul_f32 v{M}, s{S_E}, v{M}""")
    pr=list(range(S,S+20,2))
    for b in pr: A(f"v_pk_fma_f32 {v(b,2)}, {v(b,2)}, s[{S_E}:{S_E+1}], {v(M,2)} op_sel_hi:[1,0,0] neg_lo:[0,0,1] neg_hi:[0,0,1]\nv_exp_f32 v{b}, v{b}\nv_exp_f32 v{b+1}, v{b+1}")
    A(f"v_pk_add_f32 {v(SU,2)}, {v(pr[0],2)}, {v(pr[1],2)}")
    for b in pr[2:]: A(f"v_pk_add_f32 {v(SU,2)}, {v(SU,2)}, {v(b,2)}")
    A(f"""v_add_f32 v{M}, v{SU}, v{SU+1}
    v_add_f32 v{M2}, v{SU}, v{SU+1}
    v_permlane32_swap_b32 v{M}, v{M2}
    v_add_f32 v{M}, v{M}, v{M2}
    v_rcp_f32 v{M}, v{M}""")
    for n,b in enumerate(pr): A(f"v_pk_mul_f32 {v(b,2)}, {v(b,2)}, {v(M,2)} op_sel_hi:[1,0]\nv_cvt_pk_bf16_f32 v{S+n}, v{b}, v{b+1}")
    for x in range(4): m8(A,O[x],v(VMR+2*x,2),v(S+8,2),0)
    def epi(x):
        for j in range(2):
            for i in range(4): A(f"v_cvt_pk_bf16_f32 v{K+8*x+4*j+i}, v{O[x]+8*j+2*i}, v{O[x]+8*j+2*i+1}")
            A(f"buffer_store_dwordx4 {v(K+8*x+4*j,4)}, v{L16}, {ws}, s{T[2+(x>>1)]} offen offset:{1024*(2*(x&1)+j)} sc1")
    for x in range(5):
        if x<4:
            for j in range(2): mf(A,O[x],v(V+8*x+4*j,4),v(S+4*j,4),v(O[x],16))
        if x: epi(x-1)
    A.wait(vm=0); publish(A,S_FL,S_TG,t0,t1); st(6); st.mark(4)
    A(f"s_add_u32 s{S_SEG}, s{S_SEG}, 3\ns_cmp_lt_u32 s{S_SEG}, 64\ns_cbranch_scc1 AT_LOOP")
def att(A,cfg,st):
    A(f"""R_ATT:
    s_sub_u32 s{T[0]}, s{S_WT}, 192
    s_mul_i32 s{S_B}, s{T[0]}, 52
    s_lshr_b32 s{S_B}, s{S_B}, 8
    s_mul_i32 s{T[1]}, s{S_B}, 5
    s_sub_u32 s{S_A}, s{T[0]}, s{T[1]}
    s_lshl_b32 s{S_A}, s{S_A}, 8
    s_lshl_b32 s{T[1]}, s{S_W}, 10
    v_add_u32 v{t0}, s{T[1]}, v{L16}
    s_and_b32 s{T[1]}, s{T[0]}, 7
    s_lshl_b32 s{T[1]}, s{T[1]}, 12
    s_lshl_b32 s{T[0]}, s{T[0]}, 13
    s_add_u32 s{T[0]}, s{T[0]}, {KVB}
    s_add_u32 s{T[2]}, s{T[0]}, 4096
    v_mov_b64 v[12:13], 0
    v_mov_b64 v[14:15], 0""")
    for i in range(3): A(f"buffer_store_dwordx4 v[12:15], v{t0}, {ws}, s{T[i]} offen sc1")
    bar(A,vm=0); w0(A,lambda:dbg_add(A,D_READY,t0,t1))
    srd(A,WG,P_WO,576*1152)
    A(f"s_cmp_ge_u32 s{S_WT}, 212\ns_cbranch_scc1 AT_NW"); wload128(A,1152,18,True); A("AT_NW:")
    wait_dbg(A,D_READY,NREADY,t0,t1,43); st(0)
    A("AT_LAYER:"); a2(A,cfg,st); attn(A,cfg,st)
    srd(A,XS,P_WS,2048*1152,X2); nextlayer(A,"AT_LAYER")
```

```python
from common import *
IDX,L16,WB,QKW,QR,H1S,H1S9,H2S,L4,T16,AFR,T0=range(12); KXA=H2S
ACC=12;STG=28;AF=44;VA=52;VX=60;S2=68
LO=0;LMEM=2048;LQK=11264;LKX=15360;LW=23552;LSP=162816
S_C1=68;S_TAG=69;S_UNIT=70;S_H1L=71;S_KMO=72;S_VMO=73;S_VXO=74;S_FL=75;S_PROG=76;S_KNOWN=77;S_W2K=78;S_W512=79
S_WC=26;S_CL=27;S_DSO=42;S_DSH=43;S_US=3;S_H2A=59;S_H2B=2;S_PUB=28;S_KMS=29
M0_=96;MODD=98;MLO=100
ws=f"s[{WS}:{WS+3}]"; wg=f"s[{WG}:{WG+3}]"
loc={}; na=0; nv=0; nl=0
QL=[(p%4,p//4) for p in range(0,33,3)]
ORD=[8,0,1,2,3,4,5,6,7]; OSEQ=[(t,c) for t in ORD for c in range(2)]; OL=[OSEQ[p] for p in (0,1,8,9,16,17)]
for c in range(9):
    for t in range(4):
        if (t,c) in QL: loc[('qk',t,c)]=('l',nl); nl+=1
        else: loc[('qk',t,c)]=('a',na*8); na+=1
for c in range(9):
    for t in range(2): loc[('v',t,c)]=('v',72+nv*8); nv+=1
for t in range(9):
    for c in range(2):
        if (t,c) in OL: loc[('o',t,c)]=('l',nl); nl+=1
        elif na<32: loc[('o',t,c)]=('a',na*8); na+=1
        else: loc[('o',t,c)]=('v',72+nv*8); nv+=1
SB=[STG,STG+8,VA]; US=4096+128
assert na==32 and nv==23 and nl==17
def rowi(c,i): return 64*c+32*(i>>2)+8*(i&1)+2*((i>>1)&1)
def put(A,key,i,hi,r1,r0,stage):
    k,b=loc[key]; sel=S_PHI if hi else S_PLO
    if k=='v': A(f"v_perm_b32 v{b+i}, v{r1}, v{r0}, s{sel}")
    elif k=='a': A(f"v_perm_b32 v{T0}, v{r1}, v{r0}, s{sel}\nv_accvgpr_write_b32 a{b+i}, v{T0}")
    else: A(f"v_perm_b32 v{stage+i}, v{r1}, v{r0}, s{sel}")
def flush(A,key,stage,half):
    k,b=loc[key]
    if k=='l': A(f"ds_write_b128 v{WB}, {v(stage+4*half,4)} offset:{b*2048+half*1024}")
def load_weights(A):
    H=S_ROLE; g,col,ro,va=12,13,14,15
    A(f"""v_lshrrev_b32 v{g}, 4, v0
    v_and_b32 v{col}, 15, v0
    v_lshrrev_b32 v{ro}, 1, v{g}
    v_lshlrev_b32 v{ro}, 4, v{ro}
    v_and_b32 v{va}, 1, v{g}
    v_lshl_add_u32 v{ro}, v{va}, 2, v{ro}""")
    A(f"s_cmp_lt_u32 s{S_W}, 2\ns_cselect_b32 s{WG}, s{P_BQ}, s{P_BK}\ns_cselect_b32 s{WG+1}, s{P_BQ+1}, s{P_BK+1}\ns_mov_b32 s{WG+2}, {576*8192}")
    A(f"""s_and_b32 s{T[0]}, s{S_W}, 1
    s_lshl_b32 s{T[0]}, s{T[0]}, 7
    s_lshl_b32 s{T[1]}, s{H}, 8
    s_add_u32 s{T[0]}, s{T[0]}, s{T[1]}
    v_lshlrev_b32 v{va}, 13, v{ro}
    v_lshl_add_u32 v{va}, v{col}, 3, v{va}
    v_add_u32 v{va}, s{T[0]}, v{va}""")
    def ldq(c):
        b=72+(c%4)*32
        for i in range(8):
            for p in range(2):
                A(f"s_mov_b32 s{T[2]}, {(rowi(c,i)+p)*8192}\nbuffer_load_dwordx2 {v(b+i*4+p*2,2)}, v{va}, {wg}, s{T[2]} offen")
    for c in range(3): ldq(c)
    for c in range(9):
        b=72+(c%4)*32
        for i in range(8):
            for t in range(4): put(A,('qk',t,c),i,t&1,b+i*4+2+(t>>1),b+i*4+(t>>1),STG+8*t)
        for t in range(4): flush(A,('qk',t,c),STG+8*t,0); flush(A,('qk',t,c),STG+8*t,1)
        if c+3<9: ldq(c+3)
        A.wait(lg=0)
    srd(A,WG,P_BO,32*147456); vb=16
    A(f"""s_mul_i32 s{T[1]}, s{H}, 147456
    s_lshl_b32 s{T[0]}, s{S_W}, 8
    s_add_u32 s{T[0]}, s{T[0]}, s{T[1]}
    v_mul_u32_u24 v{va}, {4*1152}, v{g}
    v_mul_u32_u24 v{vb}, 1152, v{ro}
    v_lshl_add_u32 v{va}, v{col}, 4, v{va}
    v_add_u32 v{va}, s{T[0]}, v{va}
    s_lshl_b32 s{T[0]}, s{S_W}, 5
    s_add_u32 s{T[0]}, s{T[0]}, s{T[1]}
    s_add_u32 s{T[0]}, s{T[0]}, 1024
    v_lshl_add_u32 v{vb}, v{col}, 1, v{vb}
    v_add_u32 v{vb}, s{T[0]}, v{vb}""")
    for c in range(2):
        for i in range(8):
            for p in range(2):
                A(f"s_mov_b32 s{T[3]}, {(64*c+16*(i>>1)+2*(i&1)+p)*1152}\nbuffer_load_dwordx4 {v(72+c*64+i*8+p*4,4)}, v{va}, {wg}, s{T[3]} offen")
                A(f"s_mov_b32 s{T[2]}, {(rowi(c,i)+p)*1152}\nbuffer_load_ushort v{20+c*16+i*2+p}, v{vb}, {wg}, s{T[2]} offen")
    for c in range(2):
        for t in range(8):
            kb=72+(2*(t&1)+c)*32+(t>>1)
            for i in range(8): put(A,('o',t,c),i,i&1,kb+(i>>1)*8+4,kb+(i>>1)*8,56)
            flush(A,('o',t,c),56,0); flush(A,('o',t,c),56,1); A.wait(lg=0)
        for i in range(8): put(A,('o',8,c),i,0,20+c*16+i*2+1,20+c*16+i*2,56)
        flush(A,('o',8,c),56,0); flush(A,('o',8,c),56,1); A.wait(lg=0)
    srd(A,WG,P_BV,576*8192)
    A(f"""s_lshl_b32 s{T[0]}, s{S_W}, 6
    s_lshl_b32 s{T[1]}, s{H}, 8
    s_add_u32 s{T[0]}, s{T[0]}, s{T[1]}
    v_lshlrev_b32 v{va}, 13, v{ro}
    v_lshl_add_u32 v{va}, v{col}, 2, v{va}
    v_add_u32 v{va}, s{T[0]}, v{va}""")
    def ldv(c):
        for i in range(8):
            for p in range(2):
                A(f"s_mov_b32 s{T[2]}, {(rowi(c,i)+p)*8192}\nbuffer_load_dword v{loc[('v',p,c)][1]+i}, v{va}, {wg}, s{T[2]} offen")
    for c in range(3): ldv(c)
    for c in range(9):
        for i in range(8):
            r0=loc[('v',0,c)][1]+i; r1=loc[('v',1,c)][1]+i
            A(f"v_perm_b32 v{T0}, v{r1}, v{r0}, s{S_PLO}\nv_perm_b32 v{r1}, v{r1}, v{r0}, s{S_PHI}\nv_mov_b32 v{r0}, v{T0}")
        if c+3<9: ldv(c+3)
def setup(A,cfg):
    H=S_ROLE; g,col,hi,gq,x,y,ta=12,13,14,15,16,17,18
    A(f"""v_lshrrev_b32 v{g}, 4, v0
    v_and_b32 v{col}, 15, v0
    v_lshrrev_b32 v{hi}, 5, v0
    v_and_b32 v{gq}, 1, v{g}
    v_lshlrev_b32 v{ta}, 1, v{g}
    v_lshlrev_b32 v{L16}, 4, v0
    s_mul_i32 s{T[0]}, s{S_W}, 34816
    s_add_u32 s{T[0]}, s{T[0]}, {LW}
    v_add_u32 v{WB}, s{T[0]}, v{L16}
    s_lshl_b32 s{S_W2K}, s{S_W}, 11
    s_lshl_b32 s{S_W512}, s{S_W}, 9
    v_and_b32 v{x}, 7, v0
    v_lshrrev_b32 v{y}, 3, v0
    v_xor_b32 v{AFR}, v{x}, v{y}
    v_lshlrev_b32 v{AFR}, 4, v{AFR}
    v_lshl_add_u32 v{T16}, v{x}, 7, v{AFR}
    v_add_u32 v{T16}, s{S_W2K}, v{T16}
    v_lshrrev_b32 v{x}, 2, v{col}
    v_and_b32 v{y}, 1, v{col}
    v_lshl_add_u32 v{gq}, v{x}, 1, v{y}
    v_bfe_u32 v{y}, v{col}, 1, 1
    v_add_u32 v{y}, v{y}, v{ta}
    v_xor_b32 v{AFR}, v{gq}, v{y}
    v_lshlrev_b32 v{AFR}, 4, v{AFR}
    v_lshl_add_u32 v{AFR}, v{y}, 7, v{AFR}
    v_bfe_u32 v{x}, v0, 2, 3
    s_lshl_b32 s{T[0]}, s{S_W}, 1
    v_add_u32 v{y}, s{T[0]}, v{hi}
    v_xor_b32 v{y}, v{x}, v{y}
    v_lshlrev_b32 v{y}, 4, v{y}
    v_lshl_add_u32 v{y}, v{x}, 7, v{y}
    v_and_b32 v{x}, 3, v0
    v_lshl_add_u32 v{L4}, v{x}, 2, v{y}
    v_add_u32 v{L4}, 8192, v{L4}
    v_lshrrev_b32 v{x}, 2, v{col}
    v_lshlrev_b32 v{QKW}, 8, v{x}
    v_and_b32 v{x}, 1, v{col}
    v_lshl_add_u32 v{QKW}, v{x}, 7, v{QKW}
    v_lshl_add_u32 v{QKW}, v{ta}, 4, v{QKW}
    v_bfe_u32 v{x}, v{col}, 1, 1
    v_lshl_add_u32 v{QKW}, v{x}, 3, v{QKW}
    s_lshl_b32 s{T[0]}, s{S_W}, 10
    v_add_u32 v{QKW}, s{T[0]}, v{QKW}
    v_lshrrev_b32 v{x}, 2, v{col}
    v_lshlrev_b32 v{x}, 5, v{x}
    v_xor_b32 v{QKW}, v{QKW}, v{x}
    s_cmp_lt_u32 s{S_W}, 2
    s_cselect_b32 s{T[0]}, 32, 0
    v_xor_b32 v{QKW}, s{T[0]}, v{QKW}
    v_lshlrev_b32 v{QR}, 4, v{gq}
    v_lshl_add_u32 v{QR}, v{g}, 7, v{QR}
    v_bfe_u32 v{y}, v{col}, 1, 1
    v_xor_b32 v{y}, 1, v{y}
    v_lshl_add_u32 v{QR}, v{y}, 11, v{QR}
    v_and_b32 v{x}, 7, v{col}
    v_lshrrev_b32 v{y}, 3, v{col}
    s_mul_i32 s{T[0]}, s{S_W}, {8*US}
    s_lshl_b32 s{T[1]}, s{H}, 7
    s_add_u32 s{T[1]}, s{T[1]}, {H1}
    s_add_u32 s{T[0]}, s{T[0]}, s{T[1]}
    v_lshl_add_u32 v{y}, v{y}, 2, v{g}
    v_mul_u32_u24 v{H1S}, {US}, v{y}
    v_lshl_add_u32 v{H1S}, v{x}, 4, v{H1S}
    v_add_u32 v{H1S}, s{T[0]}, v{H1S}
    s_lshl_b32 s{T[0]}, s{S_W}, 5
    s_add_u32 s{T[0]}, s{T[0]}, s{T[1]}
    s_add_u32 s{T[0]}, s{T[0]}, {64*US}
    v_and_b32 v{y}, 1, v{col}
    v_add_u32 v{y}, v{y}, v{ta}
    v_mul_u32_u24 v{H1S9}, {US}, v{y}
    v_lshrrev_b32 v{y}, 1, v{col}
    v_lshl_add_u32 v{H1S9}, v{y}, 2, v{H1S9}
    v_add_u32 v{H1S9}, s{T[0]}, v{H1S9}
    s_lshl_b32 s{S_UNIT}, s{S_W}, 5
    s_add_u32 s{S_UNIT}, s{S_UNIT}, s{H}
    s_mul_i32 s{S_H1L}, s{S_UNIT}, {US}
    s_add_u32 s{S_H1L}, s{S_H1L}, {H1}
    s_lshl_b32 s{T[0]}, s{S_UNIT}, 7
    s_lshl_b32 s{T[2]}, s{H}, 5
    s_add_u32 s{T[2]}, s{T[2]}, s{S_W}
    s_lshl_b32 s{T[2]}, s{T[2]}, 3
    s_cmp_lt_u32 s{S_W}, 2
    s_cselect_b32 s{T[0]}, s{T[2]}, s{T[0]}
    s_cselect_b32 s{T[2]}, 7, 3
    s_add_u32 s{T[0]}, s{T[0]}, {H2}
    s_mov_b32 s{S_US}, {32*US}
    s_add_u32 s{S_H2A}, s{S_W2K}, {H2}
    s_lshl_b32 s{S_H2B}, s{S_W}, 8
    s_add_u32 s{S_H2B}, s{S_H2B}, {H2+8192}
    v_lshlrev_b32 v{H2S}, 4, v{x}
    v_lshl_add_u32 v{H2S}, v{g}, s{T[2]}, v{H2S}
    v_add_u32 v{H2S}, s{T[0]}, v{H2S}
    v_and_b32 v{y}, 40, v0
    v_cmp_ne_u32 vcc, 0, v{y}
    v_mov_b32 v{y}, 0x40003100
    v_cndmask_b32 v{H2S}, v{H2S}, v{y}, vcc
    v_lshrrev_b32 v{y}, 3, v{col}
    v_lshl_add_u32 v{y}, v{y}, 4, v{x}
    v_lshlrev_b32 v{y}, 4, v{y}
    v_lshl_add_u32 v{y}, v{g}, 9, v{y}
    s_cmp_eq_u32 s{S_W}, 3
    s_cselect_b64 vcc, -1, 0
    v_cndmask_b32 v{KXA}, v{H2S}, v{y}, vcc
    s_mov_b32 s{M0_}, 0x00030003
    s_mov_b32 s{M0_+1}, 0x00030003
    s_mov_b32 s{MODD}, 0xaaaaaaaa
    s_mov_b32 s{MODD+1}, 0xaaaaaaaa
    s_mov_b32 s{MLO}, -1
    s_mov_b32 s{MLO+1}, 0
    s_mov_b32 s{S_C1}, 0x3e0293ee
    s_mov_b32 s{S_TAG}, 0
    s_mov_b32 s{S_KNOWN}, 0
    s_cmp_eq_u32 s{S_W}, 3
    s_cselect_b32 s{S_DSH}, 7, 3
    s_cselect_b32 s{S_CL}, 4096, -1
    s_mov_b32 s{S_WC}, 0x40000000
    s_cmp_eq_u32 s{S_W}, 1
    s_cselect_b32 s{S_WC}, {KB-VB+32*8192-2048}, s{S_WC}
    s_cmp_eq_u32 s{S_W}, {2 if cfg.get('vwarm') else 9}
    s_cselect_b32 s{S_WC}, {32*8192-4096}, s{S_WC}
    v_mov_b32 v{x}, 0
    v_lshlrev_b32 v{y}, 2, v0
    v_add_u32 v{y}, {LSP+768}, v{y}
    ds_write_b32 v{y}, v{x}
    s_lshl_b32 s{S_FL}, s{H}, 6
    s_add_u32 s{S_FL}, s{S_FL}, {F_CH*FS}
    s_cmp_eq_u32 s{S_W}, 3
    s_cselect_b32 s{S_PUB}, s{S_FL}, 0x40000000""")
    for i in range(4): A(f"v_mov_b32 v{20+i}, 0")
    A(f"""buffer_store_dwordx4 v[20:23], v{H1S}, {ws}, 0 offen sc1
    buffer_store_dwordx4 v[20:23], v{H1S}, {ws}, s{S_US} offen sc1
    buffer_store_dword v20, v{H1S9}, {ws}, 0 offen sc1
    s_cmp_ge_u32 s{S_UNIT}, 72
    s_cbranch_scc1 CH_NZ
    buffer_store_dwordx2 v[20:21], v{H2S}, {ws}, 0 offen sc1
    CH_NZ:""")
    bar(A,vm=0)
    A(f"s_cmp_lg_u32 s{S_W}, 0\ns_cbranch_scc1 CH_NA"); dbg_add(A,D_READY,20,21); A("CH_NA:")
def lds_frag(A,key,buf):
    b=loc[key][1]
    A(f"ds_read_b128 {v(SB[buf],4)}, v{WB} offset:{b*2048}\nds_read_b128 {v(SB[buf]+4,4)}, v{WB} offset:{b*2048+1024}")
def smf(A,acc,af,key,buf=0):
    k,b=loc[key]; B=v(SB[buf],8) if k=='l' else r(k,b,8)
    A(f"v_smfmac_f32_16x16x64_bf16 {v(acc,4)}, {v(af,4)}, {B}, v{IDX}")
def zero(A,b,n,w=0):
    for i in range(0,n,2): A(f"v_mov_b32 v{b+i}, 0\nv_mov_b32 v{b+i+1}, 0" if w else f"v_mov_b64 {v(b+i,2)}, 0")
def retry(A,loop,code):
    skip=A.lab('nowb')
    A(f"s_and_b32 s{T[0]}, s{S_TO}, 31\ns_cbranch_scc1 {skip}\nbuffer_wbl2 sc1"); A.wait(vm=0); A(f"{skip}:")
    timeout(A,loop,code)
def check(A,rs,tmp):
    pr=[(rs[i],rs[min(i+1,len(rs)-1)]) for i in range(0,len(rs),2)]
    ne=lambda d,p: A(f"v_bitop3_b32 v{d}, v{p[0]}, v{p[1]}, s{S_TAG} bitop3:0x7e")
    ne(tmp,pr.pop(0))
    while len(pr)>=2: ne(tmp+1,pr.pop(0)); ne(tmp+2,pr.pop(0)); A(f"v_or3_b32 v{tmp}, v{tmp}, v{tmp+1}, v{tmp+2}")
    if pr: ne(tmp+1,pr.pop(0)); A(f"v_bitop3_b32 v{tmp}, v{tmp}, v{tmp+1}, 1 bitop3:0xa8")
    else: A(f"v_and_b32 v{tmp}, 1, v{tmp}")
    A(f"v_cmp_ne_u32 vcc, 0, v{tmp}")
def known(A,cfg,r=S2):
    if cfg.get('only_chain'): A(f"s_mov_b32 s{S_KNOWN}, 1000"); return
    A(f"""v_mov_b32 v{r}, {LSP+768}
    ds_read_b32 v{r+1}, v{r} offset:8
    ds_read_b32 v{r}, v{r} offset:4
    v_min_u32 v{r}, v{r}, v{r+1}
    v_readfirstlane_b32 s{T[0]}, v{r}
    s_max_u32 s{S_KNOWN}, s{S_KNOWN}, s{T[0]}""")
def kx_fetch(A,cfg):
    ok=A.lab('kxok')
    if not cfg.get('only_chain'):
        A(f"""s_lshl_b32 s{T[0]}, s{S_L}, 6
        s_add_u32 s{T[0]}, s{T[0]}, s{S_SEG}
        s_add_u32 s{T[3]}, s{T[0]}, 1
        s_cmp_ge_u32 s{S_KNOWN}, s{T[3]}
        s_cbranch_scc1 {ok}
        v_bfe_u32 v{AF}, v{L16}, 4, 1
        v_lshlrev_b32 v{AF}, 11, v{AF}
        s_lshl_b32 s{T[1]}, s{S_ROLE}, 6
        s_add_u32 s{T[1]}, s{T[1]}, {(F_QKV+32)*FS}""")
        poll_ge(A,WS,AF,f"s{T[1]}",f"s{T[3]}",AF+1,3,sleep=1)
        A(f"v_readlane_b32 s{T[0]}, v{AF+1}, 0\nv_readlane_b32 s{T[1]}, v{AF+1}, 1\ns_min_u32 s{S_KNOWN}, s{T[0]}, s{T[1]}\n{ok}:")
    A(f"s_add_u32 s{T[0]}, s{S_VXO}, {KB-VB-3*2048}")
    for c in range(4):
        for t in range(2):
            A(f"s_mov_b32 m0, {LKX+(2*c+t)*1024-t*128}\nbuffer_load_dwordx4 v{KXA}, {ws}, s{T[0]} offen offset:{t*128} sc1 lds")
        if c<3: A(f"s_add_u32 s{T[0]}, s{T[0]}, 2048")
def vload(A):
    A(f"v_and_b32 v{T0}, -256, v{L16}\nv_add_u32 v{T0}, v{T0}, v{L16}\nbuffer_load_dwordx4 {v(VX,4)}, v{T0}, {ws}, s{S_VXO} offen sc1\nbuffer_load_dwordx4 {v(VX+4,4)}, v{T0}, {ws}, s{S_VXO} offen offset:256 sc1")
def pre2(A,cfg):
    for n in range(3): lds_frag(A,('qk',)+QL[n],n)
    A.forget()
def kmread(A,R):
    A(f"""v_lshrrev_b32 v{R+2}, 1, v{L16}
    v_add_u32 v{R}, s{S_W512}, v{R+2}
    v_lshrrev_b32 v{R+1}, 3, v{R}
    v_and_b32 v{R+1}, 96, v{R+1}
    v_xor_b32 v{R}, v{R}, v{R+1}
    ds_read_b64 {v(R,2)}, v{R} offset:{LQK+2048}
    v_mov_b32 v{R+3}, s{S_PROG}
    s_mov_b32 s{S_KMS}, s{S_KMO}
    s_add_u32 s{S_KMO}, s{S_KMO}, {32*2048}""")
kmst=lambda R: f"buffer_store_dwordx2 {v(R,2)}, v{R+2}, {ws}, s{S_KMS} offen sc1"
def kwait(A,tg,r):
    A(f"""v_bfe_u32 v{r}, v{L16}, 4, 1
    v_lshlrev_b32 v{r}, 11, v{r}
    s_add_u32 s{T[1]}, s{S_FL}, {(F_QKV+32-F_CH)*FS}""")
    poll_ge(A,WS,r,f"s{T[1]}",f"s{tg}",r+1,3,sleep=1)
    A(f"v_readlane_b32 s{T[0]}, v{r+1}, 0\nv_readlane_b32 s{T[1]}, v{r+1}, 1\ns_min_u32 s{S_KNOWN}, s{T[0]}, s{T[1]}")
def light(A,rs,tmp):
    ne=lambda d,x,y: A(f"v_bitop3_b32 v{d}, v{x}, v{y}, s{S_TAG} bitop3:0x7e")
    ne(tmp,rs[0],rs[1]); ne(tmp+1,rs[2],rs[3])
    if len(rs)>4: A(f"v_bitop3_b32 v{tmp}, v{tmp}, v{rs[4]}, s{S_TAG} bitop3:0xf6")
    A(f"v_bitop3_b32 v{tmp}, v{tmp}, v{tmp+1}, 1 bitop3:0xa8\nv_cmp_ne_u32 vcc, 0, v{tmp}")
def pre1(A,cfg,z=True,r=S2):
    if z: zero(A,ACC+8,8); zero(A,ACC,8)
    known(A,cfg,r)
    A(f"""s_add_u32 s{T[0]}, s{S_WC}, s{S_VXO}
    s_add_u32 s{T[1]}, s{S_PROG}, 2
    s_cmp_ge_u32 s{S_KNOWN}, s{T[1]}
    s_cselect_b32 s{T[0]}, s{T[0]}, 0x40000000
    s_cmp_ge_u32 s{S_SEG}, 62
    s_cselect_b32 s{T[0]}, 0x40000000, s{T[0]}
    s_add_u32 s{T[1]}, s{S_FL}, {(F_QKV-F_CH)*FS}
    s_cmp_eq_u32 s{S_W}, 3
    s_cselect_b32 s{S_DSO}, s{T[1]}, s{T[0]}
    s_lshr_b32 s{T[0]}, s{S_W512}, 1
    s_add_u32 m0, s{T[0]}, {LSP}
    v_lshrrev_b32 v{S2}, 2, v{L16}""")
def chain(A,cfg):
    st=Stamp(A,cfg.get('stamp')); H=S_ROLE; stc=(lambda i:None) if cfg.get('fine') else st
    tr=lambda i: A.raw(f's_memtime s[{80+2*i}:{81+2*i}]') if cfg.get('trace')==1 else 0
    t2=lambda i: A.raw(f's_memtime s[{80+2*i}:{81+2*i}]') if cfg.get('trace')=='2' else 0
    setup(A,cfg); load_weights(A)
    A(f"v_and_b32 v12, 2, v0\nv_cmp_ne_u32 vcc, 0, v12\nv_mov_b32 v12, 0x44444444\nv_mov_b32 v13, 0xeeeeeeee\nv_cndmask_b32 v{IDX}, v12, v13, vcc")
    wait_dbg(A,D_READY,32 if cfg.get('only_chain') else NREADY,12,13,1)
    srd(A,WG,P_MEM,9216)
    A(f"s_mov_b32 s{S_L}, 0\ns_mov_b32 s{S_LB}, {LB[0]}"); st.init()
    A(f"""CH_LAYER:
    s_mov_b32 s{S_SEG}, 0
    s_lshl_b32 s{S_PROG}, s{S_L}, 6
    s_lshl_b32 s{T[0]}, s{H}, 13
    s_add_u32 s{T[0]}, s{T[0]}, s{S_LB}
    s_add_u32 s{S_VXO}, s{T[0]}, {VB}
    s_add_u32 s{S_VXO}, s{S_VXO}, s{S_W2K}
    s_lshl_b32 s{T[0]}, s{H}, 11
    s_add_u32 s{T[0]}, s{T[0]}, s{S_LB}
    s_add_u32 s{T[0]}, s{T[0]}, s{S_W512}
    s_add_u32 s{S_KMO}, s{T[0]}, {KM}
    s_mov_b32 s{S_KMS}, 0x40000000
    v_mov_b32 v{VX+2}, 0
    v_mov_b32 v{VX+3}, s{S_PROG}
    s_add_u32 s{S_VMO}, s{T[0]}, {VM}""")
    A(f"s_cmp_lg_u32 s{S_W}, 3\ns_cbranch_scc1 CH_K0"); st.mark(0); kx_fetch(A,cfg); st.mark(1); st.clk(0); A("CH_K0:")
    pre1(A,cfg); pre2(A,cfg); bar(A)
    if cfg.get('vh2'): vload(A)
    A(f"""v_lshrrev_b32 v{S2+1}, 7, v{L16}
    v_mul_u32_u24 v{S2+1}, 1152, v{S2+1}
    v_and_b32 v{S2+2}, 127, v{L16}
    v_add_u32 v{S2+1}, v{S2+1}, v{S2+2}
    s_lshl_b32 s{T[0]}, s{S_W}, 8
    buffer_load_dwordx4 {v(AF,4)}, v{S2+1}, {wg}, s{T[0]} offen
    buffer_load_dwordx4 {v(AF+4,4)}, v{S2+1}, {wg}, s{T[0]} offen offset:128
    v_lshrrev_b32 v{S2+1}, 9, v{L16}
    v_mul_u32_u24 v{S2+1}, 1152, v{S2+1}
    v_bfe_u32 v{S2+2}, v{L16}, 2, 7
    v_add_u32 v{S2+1}, v{S2+1}, v{S2+2}
    s_mul_i32 s{T[0]}, s{S_W}, 2304
    buffer_load_dword v{T0}, v{S2+1}, {wg}, s{T[0]} offen offset:1024""")
    A.wait(vm=0)
    wr=f"""ds_write_b128 v{T16}, {v(AF,4)} offset:{LMEM}
    ds_write_b128 v{T16}, {v(AF+4,4)} offset:{LMEM+1024}
    ds_write_b32 v{L4}, v{T0} offset:{LMEM}"""
    A(wr); A("s_branch CH_BODY")
    def ld2(): A(f"""buffer_load_dwordx4 {v(AF,4)}, v{L16}, {ws}, s{S_H2A} offen sc1
    buffer_load_dwordx4 {v(AF+4,4)}, v{L16}, {ws}, s{S_H2A} offen offset:1024 sc1
    buffer_load_dword v{T0}, v{S2}, {ws}, s{S_H2B} offen sc1""")
    ck2=lambda: light(A,[AF,AF+2,AF+4,AF+6,T0],S2+1)
    A("CH_R2:"); A.wait(lg=0); A("CH_P2:\ns_mov_b64 exec, vcc"); ld2(); A.forget(); retry(A,"CH_X2",4)
    A("CH_X2:"); A.wait(vm=0); ck2(); A("s_cbranch_vccnz CH_P2\ns_mov_b64 exec, -1"); A(wr); A("s_branch CH_BODY")
    if cfg.get('db2'):
        def l2(R,x): A(f"""buffer_load_dwordx4 {v(R,4)}, v{L16}, {ws}, s{S_H2A} offen sc1
        buffer_load_dwordx4 {v(R+4,4)}, v{L16}, {ws}, s{S_H2A} offen offset:1024 sc1
        buffer_load_dword v{x}, v{S2}, {ws}, s{S_H2B} offen sc1"""); A.vm=[]
        w2=lambda R,x: A(wr.replace(v(AF,4),v(R,4)).replace(v(AF+4,4),v(R+4,4)).replace(f"v{T0} ",f"v{x} "))
        def c2(R,x): A.wait(vm=3); light(A,[R,R+2,R+4,R+6,x],S2+1)
        def rnd(R,x,n):
            A.wait(vm=n); light(A,[R,R+2,R+4,R+6,x],S2+1); A("s_andn2_b64 exec, exec, vcc"); w2(R,x)
        A("CH_R2M:\ns_mov_b64 exec, vcc"); l2(AF,T0); retry(A,"CH_D2",4)
        A(f"CH_STEP:"); tr(4); l2(AF,T0); A(f"s_mov_b32 s{S_TO}, 400031")
        if not cfg.get('fragearly'): pre2(A,cfg)
        if cfg.get('zlate'): zero(A,ACC,16)
        A("CH_D2:"); rnd(AF,T0,0); A("s_cbranch_vccnz CH_R2M\nCH_OK2:\ns_mov_b64 exec, -1")
    else:
      A(f"CH_STEP:"); tr(4); ld2(); A(f"s_mov_b32 s{S_TO}, 400031")
      if not cfg.get('fragearly'): A.wait(vm=3); pre2(A,cfg)
      A.wait(vm=0)
      if cfg.get('fine'): st(8)
      if cfg.get('ck1'): ck2(); A("s_cbranch_vccnz CH_P2"); A(wr)
      else: A(wr); ck2(); A("s_cbranch_vccnz CH_R2")
      if cfg.get('fine'): st(9)
    A("CH_BODY:"); st.cnt(6); tr(5)
    bar(A); st(0); tr(6); t2(0)
    AB=[S2,AF,AF+4]
    af=lambda c,b: A(f"ds_read_b128 {v(b,4)}, v{AFR} offset:{LMEM+c*1024}")
    for c in range(3): af(c,AB[c])
    A(f"v_lshlrev_b32 v{T0}, s{S_DSH}, v{L16}\nv_min_u32 v{T0}, s{S_CL}, v{T0}\nbuffer_load_dword v{T0}, {ws}, s{S_DSO} offen sc1 lds")
    fq=[]; kc=int(cfg.get('kc',1)); kp=kmst(VX); pb=f"buffer_store_dword v{VX+3}, off, {ws}, s{S_PUB} sc1"
    if cfg.get('pb'): A(f"s_cmp_lg_u32 s{S_W}, 3"); A.raw("s_cbranch_scc1 CH_NP"); A.raw(pb); A.raw("CH_NP:")
    else: kp+="\n"+pb
    if kc<0: A(kp)
    class Q:
        def __call__(self,t): fq.extend(t.split("\n"))
    Bq=Q() if cfg.get('spread') else A
    afq=lambda c,b: Bq(f"ds_read_b128 {v(b,4)}, v{AFR} offset:{LMEM+c*1024}")
    for c in range(9):
        for t in range(4):
            n=QL.index((t,c)) if (t,c) in QL else 0
            smf(A,ACC+4*t,AB[c%3],('qk',t,c),n%3)
            if (t,c)==(0,0): t2(1)
            if (t,c) in QL:
                if n+3<len(QL): lds_frag(Bq,('qk',)+QL[n+3],n%3)
                elif n%3==2: zero(Bq,VA,8,cfg.get('z32'))
                else: afq(2*(n%3),STG+8*(n%3)); afq(2*(n%3)+1,STG+8*(n%3)+4)
            if t==3 and c+3<9: afq(c+3,AB[c%3])
            if fq: A(fq.pop(0))
        if c==kc: Bq(kp)
        if c==int(cfg.get('vc',0)) and not cfg.get('vh2'): vload(Bq)
    for x in fq: A(x)
    fq.clear()
    kx=lambda c,t: A(f"ds_read_b128 {v(STG+8*(c&1)+4*t,4)}, v{L16} offset:{LKX+(2*c+t)*1024}")
    pka=lambda b: f"v_add_f32 v{b}, v{b}, v{b+2}\nv_add_f32 v{b+1}, v{b+1}, v{b+3}" if cfg.get('nopk') else f"v_pk_add_f32 {v(b,2)}, {v(b,2)}, {v(b+2,2)}"
    vq=[(6,S2),(7,AF),(8,AF+4),(0,STG),(1,STG+4),(2,STG+8),(3,STG+12),(4,AF),(5,AF+4)]
    sq=[f"v_lshrrev_b32 v{ACC+8}, 4, v{L16}\nv_xor_b32 v{ACC+8}, v{ACC+8}, v{L16}",f"v_bitop3_b32 v{ACC+8}, v{QR}, v{ACC+8}, 32 bitop3:0x78",f"v_xor_b32 v{ACC+12}, 64, v{ACC+8}",f"s_add_u32 s{T[3]}, s{S_PROG}, 2","",f"s_add_u32 s{S_VXO}, s{S_VXO}, {32*8192}",f"s_add_u32 s{T[4]}, s{S_VXO}, {KB-VB}",f"s_add_u32 m0, s{S_W2K}, {LKX}"]
    def vp(n):
        c,bf=vq[n]
        for t in range(2):
            smf(A,VA+4*t,bf,('v',t,c))
            if n>=1 and t==0: A(sq.pop(0))
        if c in(7,8): af(c-3,bf)
        if c<4: kx(c>>1,c&1)
    sc=' sc1'
    t2(2); vp(0)
    for t in range(4):
        b=ACC+4*t; A(pka(b))
        if t&1: A(f"v_cvt_pk_bf16_f32 v{S2+(t>>1)}, v{b-4}, v{b}\nv_cvt_pk_bf16_f32 v{S2+2+(t>>1)}, v{b-3}, v{b+1}")
    A(f"ds_write_b64 v{QKW}, {v(S2,2)} offset:{LQK}\nds_write_b64 v{QKW}, {v(S2+2,2)} offset:{LQK+16}")
    t2(3); vp(1); vp(2); vp(3)
    A.wait(lg=3); A("s_barrier"); stc(1); tr(7); t2(4)
    F=[ACC,ACC+4,AF,AF+4]; S0=ACC+8; S1=ACC+12
    fr=lambda c: A(f"ds_read_b128 {v(F[c],4)}, v{ACC+8+4*(c&1)} offset:{LQK+c*512}")
    fr(0); fr(1)
    vp(4); vp(5); vp(6); vp(7); fr(2); vp(8); fr(3)
    mm=lambda d,x,y,c: A(f"v_mfma_f32_16x16x32_bf16 {v(d,4)}, {v(x,4)}, {v(y,4)}, {c}")
    for c in range(2):
        mm(S0,STG+8*c,F[c],v(S0,4) if c else 0); mm(S1,STG+8*c+4,F[c],v(S1,4) if c else 0); kx(c+2,0); kx(c+2,1)
    ex=[pka(VA),pka(VA+4),f"v_cvt_pk_bf16_f32 v{VA}, v{VA}, v{VA+1}",f"v_cvt_pk_bf16_f32 v{VA+1}, v{VA+4}, v{VA+5}"]
    for c in range(4): mm(S2,F[c],F[c],v(S2,4) if c else 0); A(ex[c])
    A(f"v_lshrrev_b32 v{T0}, 1, v{L16}")
    if not cfg.get('nokm'): A(f"buffer_store_dwordx2 {v(VA,2)}, v{T0}, {ws}, s{S_VMO} offen{sc}")
    def last(): A(f"s_cmp_eq_u32 s{S_SEG}, 63"); A.raw("s_cbranch_scc1 CH_LAST")
    if cfg.get('trace')!='2': last()
    PX=ACC; PM=ACC+4; ONE=VA+4; M=VA+2; M2=T0
    ex=[f"v_mov_b32 v{ONE+i}, 0x3f803f80" for i in range(4)]
    for c in range(2,4):
        mm(S0,STG+8*(c&1),F[c],v(S0,4)); A(ex.pop()); mm(S1,STG+8*(c&1)+4,F[c],v(S1,4)); A(ex.pop())
    t2(5); lds_frag(A,('o',)+OL[0],0); lds_frag(A,('o',)+OL[1],1)
    A(f"""v_max_f32 v{M}, v{S2}, v{S2+1}
    v_mov_b32 v{PM+1}, 0
    v_mov_b32 v{PM+2}, 0
    v_max3_f32 v{M}, v{M}, v{S0}, v{S0+1}
    v_max3_f32 v{M}, v{M}, v{S0+2}, v{S0+3}
    v_max3_f32 v{M}, v{M}, v{S1}, v{S1+1}
    v_max3_f32 v{M2}, v{M}, v{S1+2}, v{S1+3}
    v_max3_f32 v{M}, v{M}, v{S1+2}, v{S1+3}
    v_permlane16_swap_b32 v{M}, v{M2}
    v_max_f32 v{M+1}, v{M}, v{M2}
    v_max_f32 v{M}, v{M}, v{M2}
    v_permlane32_swap_b32 v{M}, v{M+1}
    v_max_f32 v{M}, v{M}, v{M+1}
    v_mul_f32 v{M}, s{S_C1}, v{M}""")
    m16=lambda d,x,y: A(f"v_mfma_f32_16x16x16_bf16 {v(d,4)}, {v(x,2)}, {v(y,2)}, 0")
    O0=AF; O1=AF+4
    def sm(b,d):
        if cfg.get('nopk2'): A(f"v_fma_f32 v{b}, v{b}, s{S_C1}, -v{M}\nv_fma_f32 v{b+1}, v{b+1}, s{S_C1}, -v{M}")
        else: A(f"v_pk_fma_f32 {v(b,2)}, {v(b,2)}, s[{S_C1}:{S_C1+1}], {v(M,2)} op_sel_hi:[1,0,0] neg_lo:[0,0,1] neg_hi:[0,0,1]")
        A(f"v_exp_f32 v{b}, v{b}\nv_exp_f32 v{b+1}, v{b+1}")
        return [f"v_cvt_pk_bf16_f32 v{x}, v{b}, v{b+1}" for x in d]
    p=sm(S2,[PM,PM+3]); p2=sm(S0,[PX]); A("\n".join(p+p2)); p=sm(S0+2,[PX+1])
    m16(S2,ONE,PM); A(p[0]); p=sm(S1,[PX+2]); m16(O0,VA,PM); A(p[0]); p=sm(S1+2,[PX+3]); m16(O1,VA,PM+2); A(p[0])
    stc(2); t2(6)
    A(f"v_add_u32 v{T0}, s{S_W512}, v{QR}\nv_bfe_u32 v{M}, v{T0}, 7, 3")
    mm(S2,ONE,PX,v(S2,4)); mm(O0,VX,PX,v(O0,4)); mm(O1,VX+4,PX,v(O1,4))
    A(f"v_lshlrev_b32 v{M}, 4, v{M}\nv_xor_b32 v{T0}, v{T0}, v{M}"); zero(A,ACC+8,8)
    A(f"v_rcp_f32 v{S2}, v{S2}"); zero(A,ACC,4)
    for b in (O0,O1,O0+2,O1+2): A(f"v_mul_f32 v{b}, v{b}, v{S2}\nv_mul_f32 v{b+1}, v{b+1}, v{S2}" if cfg.get('nopk3') else f"v_pk_mul_f32 {v(b,2)}, {v(b,2)}, {v(S2,2)} op_sel_hi:[1,0]")
    for i in range(4): A(f"v_cvt_pk_bf16_f32 v{O0+i}, v{O0+i}, v{O1+i}")
    A(f"ds_write_b128 v{T0}, {v(O0,4)} offset:{LO}"); zero(A,ACC+4,4); zero(A,S2,4)
    A(f"v_lshrrev_b32 v{VX}, 4, v{L16}\nv_and_b32 v{VX}, 48, v{VX}\nv_and_b32 v{VX+4}, 0x7ff, v{QR}\nv_xor_b32 v{VX}, v{VX}, v{VX+4}\nv_xor_b32 v{VX+4}, 576, v{VX}")
    if cfg.get('trace')=='2': t2(7); last()
    A(f"s_xor_b32 s{S_TAG}, s{S_TAG}, 1\ns_cmp_ge_u32 s{S_KNOWN}, s{T[3]}"); A.raw("s_cbranch_scc0 CH_KS"); A.raw("CH_KR:")
    A(f"v_and_b32 v{T0}, -128, v{L16}\nv_add_u32 v{T0}, v{T0}, v{L16}")
    bar(A); stc(3); tr(0)
    A(f"ds_read_b128 {v(VA,4)}, v{AFR} offset:{LO}\nds_read_b128 {v(VA+4,4)}, v{AFR} offset:{LO+1024}")
    FA=[AF,AF+4,VX,VX+4]; GX=VA; GY=VA+4; b=S2
    for k in range(4): A(f"ds_read_b128 {v(FA[k],4)}, v{VX+4*(k&1)} offset:{LO+1024*(k>>1)}")
    kd=lambda: A(f"buffer_load_dwordx4 v{T0}, {ws}, s{T[4]} offen sc1 lds\ns_add_u32 m0, m0, 896\nbuffer_load_dwordx4 v{T0}, {ws}, s{T[4]} offen offset:128 sc1 lds")
    if not cfg.get('kf'): kd()
    dpp="quad_perm:[1,0,3,2] row_mask:0xf bank_mask:0xf"
    e8=pka(b).split('\n')+[f"v_mov_b32_dpp v{b+2}, v{b} {dpp}",f"v_mov_b32_dpp v{b+3}, v{b+1} {dpp}",
        f"v_cvt_pk_bf16_f32 v{b}, v{b}, v{b+2}",f"v_cvt_pk_bf16_f32 v{b+1}, v{b+3}, v{b+1}",
        f"v_cndmask_b32 v{b}, v{b}, v{b+1}, s[{MODD}:{MODD+1}]",f"v_and_or_b32 v{b}, v{b}, -2, s{S_TAG}",f"buffer_store_dword v{b}, v{H1S9}, {ws}, 0 offen"]
    def epi(k):
        d=ACC+4*k; G=VA+4*(k>>1); o=G+(k&1); e=[f"v_cvt_pk_bf16_f32 v{o}, v{d}, v{d+2}",f"v_cvt_pk_bf16_f32 v{o+2}, v{d+1}, v{d+3}"]
        return e+[f"buffer_store_dwordx4 {v(G,4)}, v{H1S}, {ws}, {f's{S_US}' if k>1 else 0} offen" if k&1 else f"v_and_or_b32 v{G}, v{G}, -2, s{S_TAG}"]
    for n,(t,c) in enumerate(OSEQ):
        if n==5: fq+=e8
        if n in (9,12,17): fq+=epi({9:0,12:1,17:2}[n])
        if t==8: smf(A,S2,VA+4*c,('o',t,c),c)
        else: smf(A,ACC+4*(t>>1),FA[2*(t&1)+c],('o',t,c),c)
        if (t,c) in OL[:4]:
            rest=fq[:]; fq.clear(); lds_frag(Bq,('o',)+OL[OL.index((t,c))+2],c); fq+=rest
        for _ in range(2 if len(fq)>int(cfg.get('eq',12))-n else 1):
            if fq: A(fq.pop(0))
    for x in fq+epi(3): A(x)
    st(4); tr(1)
    if cfg.get('ackst'): A.wait(vm=0); st(8)
    if cfg.get('kf'): kd()
    kmread(A,VX)
    A(f"""s_add_u32 s{S_SEG}, s{S_SEG}, 1
    s_add_u32 s{S_PROG}, s{S_PROG}, 1
    s_add_u32 s{S_VMO}, s{S_VMO}, {32*2048}
""")
    db1=cfg.get('db1'); D=AF+4
    def sel():
        A(f"v_mov_b32 v{T0}, 0x3f80\nv_cndmask_b32 v{T0}, v{T0}, 1.0, s[{MODD}:{MODD+1}]")
        for u in range(4): A(f"s_lshl_b64 s[{T[2]}:{T[3]}], s[{M0_}:{M0_+1}], {2*u}\nv_cndmask_b32 v{AF+u}, 0, v{T0}, s[{T[2]}:{T[3]}]")
    def ld1(R):
        for i in range(4): A(f"buffer_load_dwordx4 {v(R+4*i,4)}, v{L16}, {ws}, s{S_H1L} offen offset:{i*1024} sc1")
        A.vm=[]
    def ck1(R):
        for i in range(4): A.wait(vm=7-i); mm(D,AF,R+4*i,v(D,4) if i else 0)
        light(A,list(range(R,R+16,4)),S2+1)
    zz=lambda:(zero(A,ACC+8,8),zero(A,ACC,8))
    if db1:
        A(f"s_mov_b32 s{S_TO}, 400031\ns_cmp_ge_u32 s{S_W}, 2"); A.raw("s_cbranch_scc1 CH_W23")
        if db1=='x': sel(); ld1(STG); pre1(A,cfg,False); ld1(ACC)
        if db1=='y': pre1(A,cfg,False); A.wait(vm=0); ld1(STG); sel(); A("s_sleep 1"); ld1(ACC)
        if db1=='z': pre1(A,cfg,False); ld1(STG); sel(); A("s_sleep 1"); ld1(ACC)
        if db1=='w': sel(); A.wait(vm=0); ld1(STG); pre1(A,cfg,False); ld1(ACC)
        A("CH_D1:"); ck1(STG); A("s_cbranch_vccz CH_G1"); ld1(STG); ck1(ACC); A("s_cbranch_vccz CH_G1"); ld1(ACC); retry(A,"CH_D1",5)
        A("CH_W23:")
    if cfg.get('p1early'): pre1(A,cfg,not cfg.get('zlate'))
    else: zero(A,ACC+8,8); zero(A,ACC,8)
    A(f"""s_cmp_ge_u32 s{S_UNIT}, 72
    s_cbranch_scc1 CH_F2
    v_mov_b32 v{T0}, 0x3f80
    v_cndmask_b32 v{T0}, v{T0}, 1.0, s[{MODD}:{MODD+1}]""")
    for u in range(4):
        A(f"s_lshl_b64 s[{T[2]}:{T[3]}], s[{M0_}:{M0_+1}], {2*u}\nv_cndmask_b32 v{AF+u}, 0, v{T0}, s[{T[2]}:{T[3]}]")
    A(f"s_mov_b32 s{S_TO}, 400031\ns_cmp_eq_u32 s{S_W}, 2\ns_cbranch_scc1 CH_P1W")
    if not cfg.get('now1'): A.wait(vm=2 if cfg.get('kf')==1 else 0)
    if cfg.get('d1'): A(f"s_sleep {cfg['d1']}")
    tr(2)
    if cfg.get('fine'): st(1)
    D=AF+4
    def poll1(lab,full):
        A(lab+":")
        for i in range(4): A(f"buffer_load_dwordx4 {v(STG+4*i,4)}, v{L16}, {ws}, s{S_H1L} offen offset:{i*1024} sc1")
        if cfg.get('fine'): A.wait(vm=0); st(2)
        for i in range(4): mm(D,AF,STG+4*i,v(D,4) if i else 0)
        if full: check(A,list(range(STG,STG+16)),S2+1)
        else: light(A,list(range(STG,STG+16,4)),S2+1)
        if cfg.get('fine'): st(3)
    poll1("CH_P1",False); A("s_cbranch_vccnz CH_R1\nCH_G1:"); st.cnt(7); tr(3)
    for i in range(4): A(f"v_add_f32_dpp v{D+i}, v{D+i}, v{D+i} row_ror:8 row_mask:0xf bank_mask:0xf")
    for i in range(2): A(f"v_cvt_pk_bf16_f32 v{D+i}, v{D+2*i}, v{D+2*i+1}\nv_and_or_b32 v{D+i}, v{D+i}, -2, s{S_TAG}")
    A(f"buffer_store_dwordx2 {v(D,2)}, v{H2S}, {ws}, 0 offen")
    if cfg.get('ackst'): st(5); A.wait(vm=0); st(9)
    A("CH_F2:"); st(5)
    if not cfg.get('p1early') and cfg.get('db2')!='b': pre1(A,cfg,False)
    if cfg.get('db2')=='b': A(f'v_lshrrev_b32 v{S2}, 2, v{L16}')
    if cfg.get('vh2'): vload(A); A.forget()
    if cfg.get('fragearly'): pre2(A,cfg)
    if not cfg.get('now2'): A.wait(vm=2 if cfg.get('vh2') else 0)
    if cfg.get('d2'): A(f"s_sleep {cfg['d2']}")
    A("s_barrier\ns_branch CH_STEP\nCH_R1:\ns_mov_b64 exec, vcc")
    for i in range(4): A(f"buffer_load_dwordx4 {v(STG+4*i,4)}, v{L16}, {ws}, s{S_H1L} offen offset:{i*1024} sc1")
    A.forget(); retry(A,"CH_X1",5); A("CH_X1:\ns_mov_b64 exec, -1")
    for i in range(4): A.wait(vm=3-i); mm(D,AF,STG+4*i,v(D,4) if i else 0)
    light(A,list(range(STG,STG+16,4)),S2+1); A("s_cbranch_vccz CH_G1\ns_branch CH_R1")
    poll1("CH_P1W",True); A("s_cbranch_vccz CH_G1"); retry(A,"CH_P1W",5)
    A("CH_KS:"); kwait(A,T[3],AF+4); A("s_branch CH_KR")
    A("CH_LAST:"); A.wait(lg=0); st.mark(2); st.clk(1); kmread(A,STG); A(kmst(STG)); bar(A,vm=0)
    A(f"s_add_u32 s{S_PROG}, s{S_PROG}, 1\ns_cmp_eq_u32 s{S_W}, 3\ns_cselect_b32 s{T[0]}, s{S_FL}, 0x40003100"); publish(A,T[0],S_PROG,T0,S2)
    A(f"s_cmp_lg_u32 s{S_W}, 0\ns_cbranch_scc1 CH_NWB\nv_lshlrev_b32 v{T0}, 2, v{L16}\nv_and_b32 v{T0}, 0x7c0, v{T0}\ns_mov_b32 s{S_TO}, 400031\ns_mov_b32 s{T[1]}, {F_CH*FS}")
    A(f"CH_PE:\ns_sleep 32\nbuffer_load_dword v{S2}, v{T0}, {ws}, s{T[1]} offen sc1\nv_cmp_gt_u32 vcc, s{S_PROG}, v{S2}\ns_cbranch_vccz CH_NWB"); retry(A,"CH_PE",6); A("CH_NWB:"); st.mark(3)
    A(f"s_add_u32 s{S_L}, s{S_L}, 1\ns_mov_b32 s{S_LB}, {LB[1]}\ns_cmp_lt_u32 s{S_L}, 2\ns_cbranch_scc1 CH_LAYER")
    if cfg.get('trace'):
        A(f"s_lshl_b32 s{T[0]}, s{S_ROLE}, 2\ns_add_u32 s{T[0]}, s{T[0]}, s{S_W}\ns_lshl_b32 s{T[0]}, s{T[0]}, 6\ns_add_u32 s{T[0]}, s{T[0]}, 0xE0000")
        for i in range(8): publish(A,T[0],80+2*i,T0,S2); A(f"s_add_u32 s{T[0]}, s{T[0]}, 4")
    st.dump(T0,S2); A("s_branch END")
```

```python
from asmlib import *
MB=1<<20
FLAGS=0; FS=64
F_A2=0; F_QKV=32; F_CH=128; F_ATT=160; F_OUT=256
TIM=0x8000
H2=0x10000; H1=0x20000
KVB=0x80000; KVH=2560; KVL=32*KVH
X2=1*MB
LB=[4*MB, 100*MB]
PQ=0; X1=3*MB; QB=6*MB; KB=22*MB; VB=38*MB; OB=54*MB; KM=70*MB; VM=74*MB
WS=4; XS=8; WG=12; XD=16; DB=20
P_X=24;P_WQKV=26;P_WO=28;P_MEM=32;P_BQ=34;P_BK=36;P_BV=38;P_BO=40;P_OUT=44;P_DBG=46;P_WS=48
S_ROLE=50;S_W=51;S_L=52;S_SEG=53;S_LB=54;S_TO=55;S_PLO=56;S_PHI=57;S_CODE=58
T=[60,61,62,63,64,65,66,67]
D_READY=4; D_KV=[68,132]; D_ABORT=196
NREADY=56
def srd(A,d,p,size,off=None):
    if off is None: A(f"s_mov_b32 s{d}, s{p}\ns_mov_b32 s{d+1}, s{p+1}")
    else: A(f"s_add_u32 s{d}, s{p}, {off}\ns_addc_u32 s{d+1}, s{p+1}, 0")
    A(f"s_mov_b32 s{d+2}, {size}\ns_mov_b32 s{d+3}, 0x00020000")
SLP=[0]
def timeout(A,loop,code):
    A(f"s_mov_b32 s{S_CODE}, {code}\ns_sub_u32 s{S_TO}, s{S_TO}, 1\ns_cbranch_scc0 {loop}\ns_branch ABORT")
def poll_ge(A,sr,voff,soff,tgt,vt,code,sleep=2):
    l=A.lab('poll'); d=A.lab('pdone')
    A(f"s_mov_b32 s{S_TO}, 150000\n{l}:\nbuffer_load_dword v{vt}, v{voff}, s[{sr}:{sr+3}], {soff} offen sc1")
    A(f"v_cmp_gt_u32 vcc, {tgt}, v{vt}\ns_cbranch_vccz {d}")
    if sleep: A(f"s_sleep {SLP[0] or sleep}")
    timeout(A,l,code); A(f"{d}:")
def wait_dbg(A,off,n,v0,v1,code):
    A(f"v_mov_b32 v{v0}, {off}"); poll_ge(A,DB,v0,0,n,v1,code)
def dbg_add(A,off,v0,v1):
    A(f"s_mov_b64 exec, 1\nv_mov_b32 v{v0}, {off}\nv_mov_b32 v{v1}, 1\nbuffer_atomic_add v{v1}, v{v0}, s[{DB}:{DB+3}], 0 offen sc1\ns_mov_b64 exec, -1")
def publish(A,soff,sval,v0,v1):
    A(f"s_mov_b64 exec, 1\nv_mov_b32 v{v0}, 0\nv_mov_b32 v{v1}, s{sval}\nbuffer_store_dword v{v1}, v{v0}, s[{WS}:{WS+3}], s{soff} offen sc1\ns_mov_b64 exec, -1")
def bar(A,vm=None):
    A.wait(vm=vm,lg=0); A("s_barrier")
def prologue(A,cfg):
    A(f"""s_cmp_ge_u32 s2, 256
    s_cbranch_scc1 END
    s_load_dwordx16 s[24:39], s[0:1], 0
    s_load_dwordx8 s[40:47], s[0:1], 64
    s_load_dwordx2 s[48:49], s[0:1], 96
    v_lshrrev_b32 v1, 6, v0
    v_readfirstlane_b32 s{S_W}, v1
    s_getreg_b32 s{T[0]}, hwreg(HW_REG_XCC_ID)
    s_and_b32 s{T[0]}, s{T[0]}, 7
    s_mov_b32 s{S_PLO}, 0x05040100
    s_mov_b32 s{S_PHI}, 0x07060302
    s_mov_b32 s{S_CODE}, 0""")
    if cfg.get('scatter'): A(f"s_lshr_b32 s{T[0]}, s2, 5")
    A.wait(lg=0)
    if cfg.get('stamp'): A('s_memrealtime s[30:31]'); A.wait(lg=0)
    srd(A,WS,P_WS,0x10000000); srd(A,DB,P_DBG,256); srd(A,XS,P_X,2048*1152); srd(A,XD,P_OUT,2048*1152); srd(A,WG,P_WQKV,576*3456)
    A(f"""s_cmp_lg_u32 s{S_W}, 0
    s_cbranch_scc1 TK_WAIT
    s_mov_b64 exec, 1
    s_mov_b32 s{T[1]}, 8
    TK_LOOP:
    s_lshl_b32 s{T[2]}, s{T[0]}, 5
    v_mov_b32 v1, s{T[2]}
    v_mov_b32 v2, 1
    buffer_atomic_add v2, v1, s[{DB}:{DB+3}], 0 offen sc0 sc1
    v_readfirstlane_b32 s{T[3]}, v2
    s_cmp_lt_u32 s{T[3]}, 32
    s_cbranch_scc1 TK_GOT
    s_add_u32 s{T[0]}, s{T[0]}, 1
    s_and_b32 s{T[0]}, s{T[0]}, 7
    s_sub_u32 s{T[1]}, s{T[1]}, 1
    s_cmp_lg_u32 s{T[1]}, 0
    s_cbranch_scc1 TK_LOOP
    s_mov_b32 s{T[2]}, 256
    s_mov_b32 s{T[3]}, 0
    TK_GOT:
    s_add_u32 s{T[2]}, s{T[2]}, s{T[3]}
    v_mov_b32 v1, 0
    v_mov_b32 v2, s{T[2]}
    ds_write_b32 v1, v2
    s_mov_b64 exec, -1
    TK_WAIT:""")
    bar(A)
    A(f"v_mov_b32 v1, 0\nds_read_b32 v2, v1\nv_readfirstlane_b32 s{S_ROLE}, v2")
    bar(A)
    A(f"v_and_b32 v0, 63, v0")
def epilogue(A):
    A(f"""ABORT:
    s_mov_b64 exec, 1
    v_mov_b32 v1, {D_ABORT}
    s_lshl_b32 s{S_CODE}, s{S_CODE}, 16
    s_lshl_b32 s{T[0]}, s{S_ROLE}, 8
    s_or_b32 s{S_CODE}, s{S_CODE}, s{T[0]}
    s_or_b32 s{S_CODE}, s{S_CODE}, s{S_SEG}
    v_mov_b32 v2, s{S_CODE}
    buffer_store_dword v2, v1, s[{DB}:{DB+3}], 0 offen
    END:
    s_endpgm""")
MARKS=[0]
class Stamp:
    def __init__(s,A,on,real=False): s.A=A; s.on=on; s.op='s_memrealtime' if real else 's_memtime'
    def init(s):
        if s.on:
            for i in range(12): s.A(f"s_mov_b32 s{84+i}, 0")
            s.A("s_memrealtime s[82:83]"); s.A.wait(lg=0); s.A("s_sub_u32 s94, s82, s30\n"+s.op+" s[80:81]"); s.A.wait(lg=0)
    def mark(s,i,first=False):
        if s.on and MARKS[0]:
            s.A("s_memrealtime s[82:83]"); s.A.wait(lg=0)
            for L in range(2):
                d=84+i+5*L
                if first: s.A(f"s_cmp_eq_u32 s{d}, 0\ns_cselect_b32 s83, s82, s{d}")
                else: s.A("s_mov_b32 s83, s82")
                s.A(f"s_cmp_eq_u32 s{S_L}, {L}\ns_cselect_b32 s{d}, s83, s{d}")
    def clk(s,end):
        if s.on and MARKS[0]:
            s.A("s_memtime s[82:83]"); s.A.wait(lg=0)
            s.A("s_sub_u32 s83, s82, s80\ns_add_u32 s88, s88, s83" if end else "s_mov_b32 s80, s82")
    def __call__(s,i):
        if s.on and not MARKS[0]:
            s.A(s.op+" s[82:83]"); s.A.wait(lg=0)
            s.A(f"s_sub_u32 s81, s82, s80\ns_add_u32 s{84+i}, s{84+i}, s81\ns_mov_b32 s80, s82")
    def cnt(s,i):
        if s.on and not MARKS[0]: s.A(f"s_sub_u32 s81, 400032, s{S_TO}\ns_min_u32 s81, s81, 50\ns_add_u32 s{84+i}, s{84+i}, s81")
    def dump(s,vt0,vt1):
        if s.on:
            A=s.A; A("s_memrealtime s[82:83]"); A.wait(lg=0); A("s_sub_u32 s95, s82, s30" if not MARKS[0] else "s_mov_b32 s95, s82\ns_mov_b32 s94, s30"); A(f"s_lshl_b32 s{T[0]}, s{S_ROLE}, 2\ns_add_u32 s{T[0]}, s{T[0]}, s{S_W}\ns_lshl_b32 s{T[0]}, s{T[0]}, 6\ns_add_u32 s{T[0]}, s{T[0]}, 0xE0000")
            for i in range(12):
                publish(A,T[0],84+i,vt0,vt1); A(f"s_add_u32 s{T[0]}, s{T[0]}, 4")
```

```python
from common import *
ws=f"s[{WS}:{WS+3}]"; wg=f"s[{WG}:{WG+3}]"; xs=f"s[{XS}:{XS+3}]"; xd=f"s[{XD}:{XD+3}]"
S_WT=68;S_STEP=69;S_FL=70;S_PROG=71;S_A=72;S_B=73;S_C=74;S_D=75;S_BUF=76;S_TG=77;S_E=78;S_F=79
MHI=96; OOB=0x40000000; TB=38016
XA,TW,TR,FLV,L16,G2,C32=1,2,3,4,5,6,7
t0,t1,t2,t3=8,9,10,11
RAW=20;FF=56;RING=128
mf=lambda A,d,x,y,c: A(f"v_mfma_f32_32x32x16_bf16 {v(d,16)}, {x}, {y}, {c}")
def setup(A):
    A(f"""s_sub_u32 s{S_WT}, s{S_ROLE}, 32
    v_lshlrev_b32 v{L16}, 4, v0
    v_lshrrev_b32 v{G2}, 5, v0
    v_and_b32 v{C32}, 31, v0
    v_lshrrev_b32 v{t0}, 3, v0
    s_lshl_b32 s{T[0]}, s{S_W}, 3
    v_add_u32 v{t0}, s{T[0]}, v{t0}
    v_and_b32 v{t1}, 7, v0
    v_mul_u32_u24 v{XA}, 1152, v{t0}
    v_lshl_add_u32 v{XA}, v{t1}, 4, v{XA}
    v_mul_u32_u24 v{TW}, 528, v{t1}
    v_lshl_add_u32 v{TW}, v{t0}, 4, v{TW}
    v_mul_u32_u24 v{TR}, 528, v{G2}
    v_lshl_add_u32 v{TR}, v{C32}, 4, v{TR}
    s_mov_b32 s{MHI}, 0
    s_mov_b32 s{MHI+1}, -1
    s_mov_b32 s{S_L}, 0
    s_mov_b32 s{S_SEG}, 0
    s_mov_b32 s{S_BUF}, 0
    s_mov_b32 s{S_LB}, {LB[0]}""")
def target(A,seg,add=1): A(f"s_lshl_b32 s{S_TG}, s{S_L}, 6\ns_add_u32 s{S_TG}, s{S_TG}, s{seg}\ns_add_u32 s{S_TG}, s{S_TG}, {add}")
def ldx(A,seg):
    A(f"s_mul_i32 s{T[0]}, s{seg}, 36864")
    for i in range(9): A(f"buffer_load_dwordx4 {v(RAW+4*i,4)}, v{XA}, {xs}, s{T[0]} offen offset:{128*i} sc1")
    A.forget()
def red8(A,x):
    for m in ("quad_perm:[1,0,3,2]","quad_perm:[2,3,0,1]","row_half_mirror"): A(f"v_add_f32_dpp v{x}, v{x}, v{x} {m} row_mask:0xf bank_mask:0xf")
def ln(A):
    for i in range(36): A(f"v_lshlrev_b32 v{FF+2*i}, 16, v{RAW+i}\nv_and_b32 v{FF+2*i+1}, 0xffff0000, v{RAW+i}")
    P=lambda i:v(FF+2*i,2)
    A(f"v_pk_add_f32 v[8:9], {P(0)}, {P(1)}\nv_pk_add_f32 v[10:11], {P(2)}, {P(3)}")
    for i in range(4,36,2): A(f"v_pk_add_f32 v[8:9], v[8:9], {P(i)}\nv_pk_add_f32 v[10:11], v[10:11], {P(i+1)}")
    A("v_pk_add_f32 v[8:9], v[8:9], v[10:11]\nv_add_f32 v8, v8, v9"); red8(A,8)
    A("v_mul_f32 v8, 0xbae38e39, v8")
    for i in range(36): A(f"v_pk_add_f32 {P(i)}, {P(i)}, v[8:9] op_sel_hi:[1,0]")
    A(f"v_pk_mul_f32 v[8:9], {P(0)}, {P(0)}\nv_pk_mul_f32 v[10:11], {P(1)}, {P(1)}")
    for i in range(2,36,2): A(f"v_pk_fma_f32 v[8:9], {P(i)}, {P(i)}, v[8:9]\nv_pk_fma_f32 v[10:11], {P(i+1)}, {P(i+1)}, v[10:11]")
    A("v_pk_add_f32 v[8:9], v[8:9], v[10:11]\nv_add_f32 v8, v8, v9"); red8(A,8)
    A("v_mov_b32 v9, 0x3727c5ac\nv_fmac_f32 v9, 0x3ae38e39, v8\nv_rsq_f32 v8, v9")
    for i in range(36): A(f"v_pk_mul_f32 {P(i)}, {P(i)}, v[8:9] op_sel_hi:[1,0]\nv_cvt_pk_bf16_f32 v{RING+i}, v{FF+2*i}, v{FF+2*i+1}")
def tile_write(A):
    A(f"s_xor_b32 s{S_BUF}, s{S_BUF}, {TB}\nv_add_u32 v{t0}, s{S_BUF}, v{TW}")
    for i in range(9): A(f"ds_write_b128 v{t0}, {v(RING+4*i,4)} offset:{i*4224}")
def gemm(A,f,nb=6):
    A(f"v_add_u32 v{t0}, s{S_BUF}, v{TR}")
    rd=lambda k: A(f"ds_read_b128 {v(RING+4*(k%nb),4)}, v{t0} offset:{k*1056}")
    for k in range(nb): rd(k)
    for k in range(36):
        f(k,v(RING+4*(k%nb),4))
        if k+nb<36: rd(k+nb)
def dma(A,va,sr,n,m0base,m0step,so,sostep,fl=''):
    for i in range(n):
        A(f"s_mov_b32 m0, s{m0base}\ns_add_u32 s{m0base}, s{m0base}, {m0step}\nbuffer_load_dwordx4 v{va}, {sr}, s{so} offen {fl} lds\ns_add_u32 s{so}, s{so}, {sostep}")
def trlane(A,cb,r,c): A(f"v_bfe_u32 v{cb}, v0, 4, 1\nv_bfe_u32 v{r}, v0, 2, 2\nv_and_b32 v{c}, 3, v0")
def wload128(A,stride,rows_per_ks,a2):
    bar(A)
    A(f"""v_lshrrev_b32 v{t0}, 4, v0
    v_and_b32 v{t1}, 15, v0
    v_lshlrev_b32 v{t2}, 2, v{t0}
    v_xor_b32 v{t1}, v{t1}, v{t2}
    v_lshlrev_b32 v{t1}, 4, v{t1}
    v_mul_u32_u24 v{t2}, {stride}, v{t0}
    v_add_u32 v{t2}, v{t2}, v{t1}""")
    if a2: A(f"s_and_b32 s{T[0]}, s{S_W}, 1\ns_lshl_b32 s{T[0]}, s{T[0]}, 1\ns_lshr_b32 s{T[1]}, s{S_W}, 1\ns_add_u32 s{T[0]}, s{T[0]}, s{T[1]}\ns_mul_i32 s{T[0]}, s{T[0]}, {4*stride}")
    else: A(f"s_mul_i32 s{T[0]}, s{S_W}, {4*stride}")
    A(f"s_add_u32 s{T[0]}, s{T[0]}, s{S_A}\ns_lshl_b32 s{T[1]}, s{S_W}, 10")
    dma(A,t2,wg,32 if a2 else 36,T[1],4096,T[0],rows_per_ks*stride)
    if a2:
        A(f"""v_lshrrev_b32 v{t2}, 1, v{t0}
        v_mul_u32_u24 v{t2}, 18, v{t2}
        v_and_b32 v{t0}, 1, v{t0}
        v_add_u32 v{t2}, v{t2}, v{t0}
        v_mul_u32_u24 v{t2}, {stride}, v{t2}
        v_add_u32 v{t2}, v{t2}, v{t1}
        s_mul_i32 s{T[0]}, s{S_W}, {36*stride}
        s_add_u32 s{T[0]}, s{T[0]}, {16*stride}
        s_add_u32 s{T[0]}, s{T[0]}, s{S_A}""")
        dma(A,t2,wg,4,T[1],4096,T[0],144*stride)
    trlane(A,t0,t1,t2)
    A(f"""v_xor_b32 v{t3}, s{S_W}, v{t1}
    v_lshlrev_b32 v{t3}, 6, v{t3}
    v_lshl_add_u32 v{t3}, v{t0}, 5, v{t3}
    v_lshl_add_u32 v{t3}, v{t2}, 3, v{t3}
    v_lshl_add_u32 v{t3}, v{t1}, 8, v{t3}
    v_lshl_add_u32 v{t3}, v{G2}, 11, v{t3}""")
    bar(A,vm=0)
    for k in range(36):
        for hh in range(2): A(f"ds_read_b64_tr_b16 {a(4*k+2*hh,2)}, v{t3} offset:{(k%16)*4096+hh*1024}")
        if k%16==15: A(f"v_add_u32 v{t3}, 0x10000, v{t3}")
    bar(A)
def w0(A,f):
    l=A.lab('w0'); A(f"s_cmp_lg_u32 s{S_W}, 0\ns_cbranch_scc1 {l}"); f(); A(f"{l}:")
def nextlayer(A,lab): A(f"s_add_u32 s{S_L}, s{S_L}, 1\ns_mov_b32 s{S_LB}, {LB[1]}\ns_cmp_lt_u32 s{S_L}, 2\ns_cbranch_scc1 {lab}")
def xsrd(A,d,off): A(f"s_add_u32 s{T[0]}, s{S_LB}, {off}\ns_add_u32 s{d}, s{P_WS}, s{T[0]}\ns_addc_u32 s{d+1}, s{P_WS+1}, 0")
def a1(A,cfg,st):
    W=lambda t,k:(a((t*36+k)*4,4) if t*36+k<64 else v(224+(t*36+k-64)*4,4))
    W2=lambda t,k,hh:(a((t*36+k)*4+2*hh,2) if t*36+k<64 else v(224+(t*36+k-64)*4+2*hh,2))
    D1=164;D2=180;KV=196;PA1,PA2,CL,CA,CB,CC=12,13,14,15,16,17
    A(f"s_lshr_b32 s{S_SEG}, s{S_WT}, 3\ns_mov_b32 s{S_STEP}, 24"); ldx(A,S_SEG)
    A(f"""s_and_b32 s{S_A}, s{S_WT}, 7
    s_and_b32 s{S_B}, s{S_W}, 1
    s_lshl_b32 s{S_B}, s{S_B}, 1
    v_add_u32 v{t0}, s{S_B}, v{G2}
    v_lshlrev_b32 v{t0}, 2, v{t0}
    v_xor_b32 v{t0}, v{t0}, v{C32}
    v_min_u32 v{t0}, 26, v{t0}
    v_mul_u32_u24 v{t1}, 57, v{t0}
    v_lshrrev_b32 v{t1}, 9, v{t1}
    v_mul_u32_u24 v{t1}, {1152-144}, v{t1}
    v_lshl_add_u32 v{t1}, v{t0}, 4, v{t1}
    v_mul_u32_u24 v{t0}, 3456, v{G2}
    v_add_u32 v18, v{t0}, v{t1}
    s_mul_i32 s{S_C}, s{S_A}, 144
    s_mul_i32 s{T[0]}, s{S_W}, {2*3456}
    s_add_u32 s{S_C}, s{S_C}, s{T[0]}
    s_mul_i32 s{S_D}, s{S_W}, 18
    s_sub_u32 s{T[2]}, s{S_D}, s{S_B}
    s_lshl_b32 s{T[2]}, s{T[2]}, 1""")
    trlane(A,t0,t1,t2)
    A(f"v_lshl_add_u32 v{t0}, v{t0}, 2, v{t2}\nv_cmp_gt_u32 vcc, 5, v{t0}")
    for t,(lo,hi,d) in enumerate(((144,-40,PA1),(288,-16,PA2))):
        A(f"""v_mov_b32 v{t2}, {hi}
        v_mov_b32 v{t3}, {lo}
        v_cndmask_b32 v{t2}, v{t2}, v{t3}, vcc
        v_min_u32 v{t3}, {7-t}, v{t0}
        v_lshl_add_u32 v{t2}, v{t3}, 3, v{t2}
        v_add_u32 v{t2}, s{T[2]}, v{t2}
        v_lshlrev_b32 v{t3}, 6, v{t1}
        v_xor_b32 v{t2}, v{t2}, v{t3}
        v_lshl_add_u32 v{t2}, v{t1}, 9, v{t2}
        v_lshl_add_u32 v{d}, v{G2}, 12, v{t2}""")
    for rd in range(2):
        A(f"s_lshl_b32 s{T[1]}, s{S_W}, 10"); dma(A,18,wg,36,T[1],4096,S_C,8*3456)
        A(f"v_mov_b32 v{t0}, v{PA1}\nv_mov_b32 v{t1}, v{PA2}"); bar(A,vm=0)
        for k in range(18):
            for t in range(2):
                for hh in range(2): A(f"ds_read_b64_tr_b16 {W2(t,rd*18+k,hh)}, v{t0+t} offset:{(k%8)*8192+hh*2048}")
            if k%8==7: A(f"v_add_u32 v{t0}, 0x10000, v{t0}\nv_add_u32 v{t1}, 0x10000, v{t1}")
        bar(A)
    st(1); wait_dbg(A,D_READY,NREADY,t0,t1,11)
    A(f"""s_mul_i32 s{T[0]}, s{S_A}, 72
    s_add_u32 s{S_D}, s{S_D}, s{T[0]}
    v_mov_b32 v{t3}, {OOB}
    v_subrev_u32 v{t0}, s{S_B}, v{C32}
    v_add_u32 v{t1}, s{S_D}, v{t0}
    v_lshlrev_b32 v{t1}, 6, v{t1}
    v_lshl_add_u32 v{t1}, v{G2}, 5, v{t1}
    v_add_u32 v{PA1}, {-20*64}, v{t1}
    v_cmp_le_i32 vcc, 20, v{t0}
    v_cndmask_b32 v{PA1}, v{t3}, v{PA1}, vcc
    v_add_u32 v{PA2}, {-8*64}, v{t1}
    v_cmp_gt_i32 vcc, 26, v{t0}
    v_cndmask_b32 v{PA2}, v{t3}, v{PA2}, vcc
    v_cmp_le_u32 vcc, 20, v{C32}
    v_cndmask_b32 v{PA2}, v{t3}, v{PA2}, vcc
    v_mov_b32 v{t2}, 0xff800000
    v_cndmask_b32 v{CL}, v{t2}, 0, vcc
    v_cndmask_b32 v{CB}, 0, 1.0, vcc
    v_mov_b32 v{t2}, 0x358637bd
    v_cndmask_b32 v{CC}, 0, v{t2}, vcc
    v_cmp_le_u32 vcc, 28, v{C32}
    v_cndmask_b32 v{CA}, 1.0, 0, vcc
    v_cndmask_b32 v{CB}, v{CB}, 0, vcc
    v_cndmask_b32 v{CC}, v{CC}, 1.0, vcc
    v_min_u32 v{FLV}, 17, v0
    v_lshlrev_b32 v{FLV}, 6, v{FLV}
    s_mov_b32 s{S_E}, 0x3fb8aa3b
    s_mov_b32 s{S_F}, 0x358637bd
    A1_LAYER:""")
    for i in range(0,16,2): A(f"v_mov_b64 {v(KV+i,2)}, 0")
    A("A1_LOOP:"); A.wait(vm=0); ln(A); tile_write(A); bar(A)
    A(f"s_add_u32 s{S_C}, s{S_SEG}, s{S_STEP}\ns_cmp_lt_u32 s{S_C}, 64\ns_cselect_b32 s{T[1]}, s{S_L}, 1\ns_cmp_lg_u32 s{T[1]}, 0\ns_cbranch_scc1 A1_NP"); ldx(A,S_C); A("A1_NP:")
    gemm(A,lambda k,f:(mf(A,D1,f,W(0,k),v(D1,16) if k else 0),mf(A,D2,f,W(1,k),v(D2,16) if k else 0)))
    A(f"s_mul_i32 s{T[0]}, s{S_SEG}, 36864\ns_add_u32 s{T[0]}, s{T[0]}, s{S_LB}")
    for t,D,PA in ((0,D1,PA1),(1,D2,PA2)):
        for i in range(0,16,2):
            for j in range(2): A(f"v_mul_f32 v{t0+j}, s{S_E}, v{D+i+j}\nv_min_f32 v{t0+j}, 0, v{t0+j}\nv_exp_f32 v{t0+j}, v{t0+j}")
            for j in range(2):
                x=D+i+j
                if t==0: A(f"v_max_f32 v{x}, 0, v{x}\nv_add_f32 v{x}, v{x}, v{t0+j}\nv_add_f32 v{x}, s{S_F}, v{x}")
                else: A(f"v_max_f32 v{x}, v{CL}, v{x}\nv_fma_f32 v{t0+j}, v{t0+j}, v{CB}, v{CC}\nv_fma_f32 v{x}, v{x}, v{CA}, v{t0+j}")
            A(f"v_cvt_pk_bf16_f32 v{FF+8*t+i//2}, v{D+i}, v{D+i+1}")
        for j in range(2): A(f"buffer_store_dwordx4 {v(FF+8*t+4*j,4)}, v{PA}, {ws}, s{T[0]} offen offset:{16*j} sc1")
    for j in range(2): mf(A,KV,v(FF+8+4*j,4),v(FF+4*j,4),v(KV,16))
    A(f"s_mov_b32 s{S_SEG}, s{S_C}\ns_cmp_ge_u32 s{S_SEG}, 64\ns_cbranch_scc1 A1_DONE\ns_cmp_eq_u32 s{S_L}, 0\ns_cbranch_scc1 A1_LOOP\nA1_FETCH:")
    A(f"s_and_b32 s{T[1]}, s{S_SEG}, 3\ns_mul_i32 s{T[1]}, s{T[1]}, {18*FS}\ns_add_u32 s{T[1]}, s{T[1]}, {F_OUT*FS}\ns_add_u32 s{S_TG}, s{S_SEG}, 1")
    w0(A,lambda:poll_ge(A,WS,FLV,f"s{T[1]}",f"s{S_TG}",t0,10,sleep=1)); bar(A); st.mark(0); ldx(A,S_SEG); A("s_branch A1_LOOP\nA1_DONE:")
    st(2); st.mark(1)
    B,V01,V89,VAB=FF+20,FF+21,FF+22,FF+23
    A(f"""v_mov_b32 v{t3}, {OOB}
    v_subrev_u32 v{t0}, s{S_B}, v{C32}
    v_lshlrev_b32 v{B}, 2, v{t0}
    v_lshl_add_u32 v{B}, v{G2}, 9, v{B}
    v_cmp_gt_u32 vcc, 18, v{t0}
    v_cndmask_b32 v{B}, v{t3}, v{B}, vcc
    v_cndmask_b32 v{V89}, v{B}, v{t3}, s[{MHI}:{MHI+1}]
    v_cndmask_b32 v{V01}, v{t3}, v{B}, s[{MHI}:{MHI+1}]
    v_mov_b32 v{t2}, v{V01}
    s_cmp_eq_u32 s{S_B}, 0
    s_cselect_b64 vcc, -1, 0
    v_cndmask_b32 v{V01}, v{V01}, v{B}, vcc
    v_cndmask_b32 v{VAB}, v{V89}, v{t3}, vcc
    s_lshl_b32 s{T[0]}, s{S_A}, 2
    s_add_u32 s{T[0]}, s{T[0]}, s{S_W}
    s_mul_i32 s{T[0]}, s{T[0]}, {KVH}
    s_mul_i32 s{T[1]}, s{S_L}, {KVL}
    s_add_u32 s{T[0]}, s{T[0]}, s{T[1]}
    s_add_u32 s{T[2]}, s{T[0]}, {KVB}
    s_lshl_b32 s{T[1]}, s{S_B}, 7
    s_sub_u32 s{T[0]}, s{T[2]}, s{T[1]}
    buffer_atomic_add_f32 v{KV+12}, v{t2}, {ws}, s{T[2]} offen offset:{14*128} sc1""")
    for r_ in range(12):
        va=V01 if r_<2 else B if r_<8 else V89 if r_<10 else VAB
        A(f"buffer_atomic_add_f32 v{KV+r_}, v{va}, {ws}, s{T[0]} offen offset:{(8*(r_>>2)+(r_&3))*128} sc1")
    bar(A,vm=0)
    A(f"s_lshl_b32 s{T[0]}, s{S_L}, 6\ns_add_u32 s{T[0]}, s{T[0]}, {D_KV[0]}"); w0(A,lambda:dbg_add(A,f"s{T[0]}",t0,t1))
    st(3); st.mark(2)
    A(f"s_cmp_lt_u32 s{S_WT}, 96\ns_cbranch_scc1 R_QKV\ns_cmp_lt_u32 s{S_WT}, 168\ns_cbranch_scc1 R_OUT\ns_cmp_eq_u32 s{S_L}, 1\ns_cbranch_scc1 W_END")
    A(f"s_mov_b32 s{S_L}, 1\ns_mov_b32 s{S_LB}, {LB[1]}\ns_sub_u32 s{S_SEG}, s{S_WT}, 168\ns_lshr_b32 s{S_SEG}, s{S_SEG}, 3\ns_mov_b32 s{S_STEP}, 3")
    srd(A,XS,P_WS,2048*1152,X2)
    for i in range(0,16,2): A(f"v_mov_b64 {v(KV+i,2)}, 0")
    A("s_branch A1_FETCH")
def qkv(A,cfg,st):
    D=164
    A(f"""R_QKV:
    s_lshr_b32 s{S_B}, s{S_WT}, 5
    s_and_b32 s{S_C}, s{S_WT}, 31
    s_lshl_b32 s{S_A}, s{S_C}, 8
    s_cmp_eq_u32 s{S_B}, 0
    s_cselect_b32 s{WG}, s{P_BQ}, s{P_BK}
    s_cselect_b32 s{WG+1}, s{P_BQ+1}, s{P_BK+1}
    s_cmp_eq_u32 s{S_B}, 2
    s_cselect_b32 s{WG}, s{P_BV}, s{WG}
    s_cselect_b32 s{WG+1}, s{P_BV+1}, s{WG+1}
    s_mov_b32 s{WG+2}, {576*8192}
    s_add_u32 s{S_FL}, s{S_WT}, {F_QKV}
    s_lshl_b32 s{S_FL}, s{S_FL}, 6
    v_and_b32 v13, 1, v0
    v_lshlrev_b32 v13, 8, v13
    v_lshl_add_u32 v13, v{G2}, 9, v13
    v_bfe_u32 v{t0}, v0, 1, 4
    v_lshl_add_u32 v13, v{t0}, 4, v13
    s_cmp_eq_u32 s{S_B}, 2
    s_cselect_b64 vcc, -1, 0
    v_cndmask_b32 v13, v{L16}, v13, vcc
    v_min_u32 v{FLV}, 4, v0
    v_lshlrev_b32 v{FLV}, 6, v{FLV}""")
    wload128(A,8192,16,False); st(4)
    FV=12
    def fetch(seg):
        ok=A.lab('qok'); fa=lambda: A(f"s_and_b32 s{T[1]}, s{T[1]}, 3\ns_mul_i32 s{T[1]}, s{T[1]}, {5*FS}")
        target(A,seg); A(f"v_cmp_gt_u32 vcc, s{S_TG}, v{FV}\ns_cbranch_vccz {ok}\ns_mov_b32 s{T[1]}, s{seg}"); fa()
        poll_ge(A,WS,FLV,f"s{T[1]}",f"s{S_TG}",t0,20,sleep=1); A(f"{ok}:\ns_add_u32 s{T[1]}, s{seg}, 1"); fa()
        ldx(A,seg); A(f"buffer_load_dword v{FV}, v{FLV}, {ws}, s{T[1]} offen sc1"); A.forget()
    A(f"""Q_LAYER:
    v_mov_b32 v{FV}, -1
    s_mov_b32 s{S_SEG}, 0
    s_lshl_b32 s{S_PROG}, s{S_L}, 6
    s_lshl_b32 s{S_D}, s{S_B}, 24
    s_lshl_b32 s{T[0]}, s{S_C}, 13
    s_add_u32 s{S_D}, s{S_D}, s{T[0]}
    s_lshl_b32 s{T[0]}, s{S_W}, 11
    s_add_u32 s{S_D}, s{S_D}, s{T[0]}
    s_add_u32 s{S_D}, s{S_D}, s{S_LB}
    s_add_u32 s{S_D}, s{S_D}, {QB}"""); xsrd(A,XS,X1); target(A,S_SEG)
    w0(A,lambda:poll_ge(A,WS,FLV,0,f"s{S_TG}",t0,21,sleep=1)); bar(A); fetch(S_SEG); A.wait(vm=0); st(5); st.mark(3)
    A("Q_LOOP:"); A.wait(vm=2); ln(A); tile_write(A); bar(A,vm=0)
    w0(A,lambda:publish(A,S_FL,S_PROG,t0,t1))
    A(f"s_add_u32 s{S_SEG}, s{S_SEG}, 1\ns_cmp_ge_u32 s{S_SEG}, 64\ns_cbranch_scc1 Q_NP"); fetch(S_SEG)
    A(f"Q_NP:\ns_cmp_eq_u32 s{S_B}, 2\ns_cbranch_scc1 Q_V")
    gemm(A,lambda k,f:mf(A,D,a(4*k,4),f,v(D,16) if k else 0)); A("s_branch Q_E\nQ_V:")
    gemm(A,lambda k,f:mf(A,D,f,a(4*k,4),v(D,16) if k else 0)); A("Q_E:\ns_nop 11")
    for i in range(8): A(f"v_cvt_pk_bf16_f32 v{D+16+i}, v{D+2*i}, v{D+2*i+1}")
    for j in range(2): A(f"buffer_store_dwordx4 {v(D+16+4*j,4)}, v13, {ws}, s{S_D} offen offset:{1024*j} sc1")
    A(f"s_add_u32 s{S_D}, s{S_D}, {32*8192}\ns_add_u32 s{S_PROG}, s{S_PROG}, 1\ns_sub_u32 s{T[0]}, s{S_SEG}, 2\ns_cmp_lt_u32 s{T[0]}, 62\ns_cbranch_scc1 Q_LOOP")
    bar(A,vm=0); w0(A,lambda:publish(A,S_FL,S_PROG,t0,t1)); A(f"s_cmp_lt_u32 s{S_SEG}, 64\ns_cbranch_scc1 Q_LOOP"); st(6); st.mark(4); nextlayer(A,"Q_LAYER"); A("s_branch W_END")
def resid(A,d,x):
    for i in range(2):
        A(f"v_lshlrev_b32 v{t0}, 16, v{x+i}\nv_and_b32 v{t1}, 0xffff0000, v{x+i}\nv_add_f32 v{t0}, v{t0}, v{d+2*i}\nv_add_f32 v{t1}, v{t1}, v{d+2*i+1}\nv_cvt_pk_bf16_f32 v{x+i}, v{t0}, v{t1}")
def out(A,cfg,st):
    D=20;RS=36;RA=12;FR=40;NB=52
    A(f"""R_OUT:
    s_sub_u32 s{S_A}, s{S_WT}, 96
    s_add_u32 s{S_FL}, s{S_A}, {F_OUT}
    s_lshl_b32 s{S_FL}, s{S_FL}, 6
    s_mul_i32 s{S_B}, s{S_A}, 57
    s_lshr_b32 s{S_B}, s{S_B}, 10
    s_mul_i32 s{T[0]}, s{S_B}, 18
    s_sub_u32 s{S_A}, s{S_A}, s{T[0]}
    s_lshl_b32 s{S_A}, s{S_A}, 6"""); srd(A,WG,P_BO,32*147456); trlane(A,t0,t1,t2)
    A(f"""v_lshl_add_u32 v{t3}, v{G2}, 2, v{t1}
    v_lshl_add_u32 v{t3}, v{t0}, 3, v{t3}
    v_mul_u32_u24 v{t3}, 1152, v{t3}
    v_lshl_add_u32 v{t3}, v{t2}, 4, v{t3}
    v_lshlrev_b32 v{t2}, 3, v{t2}
    v_lshl_add_u32 v{t2}, v{t0}, 5, v{t2}
    v_lshl_add_u32 v{t2}, v{t1}, 6, v{t2}
    v_lshl_add_u32 v{t2}, v{G2}, 9, v{t2}
    s_lshl_b32 s{T[2]}, s{S_W}, 15
    v_add_u32 v{t2}, s{T[2]}, v{t2}
    s_mul_i32 s{T[0]}, s{S_W}, {1024*1152}
    s_add_u32 s{T[0]}, s{T[0]}, s{S_A}"""); bar(A)
    for rd in range(2):
        A(f"s_mov_b32 s{T[1]}, s{T[2]}"); dma(A,t3,wg,32,T[1],1024,T[0],16*1152); A.wait(vm=0)
        for k in range(32):
            for hh in range(2): A(f"ds_read_b64_tr_b16 {a(4*(rd*32+k)+2*hh,2)}, v{t2} offset:{k*1024+hh*256}")
        A.wait(lg=0)
    A(f"""v_mul_u32_u24 v{RA}, 1152, v{C32}
    v_lshl_add_u32 v{RA}, v{G2}, 3, v{RA}
    s_lshl_b32 s{T[0]}, s{S_W}, 4
    s_add_u32 s{T[0]}, s{T[0]}, s{S_A}
    v_add_u32 v{RA}, s{T[0]}, v{RA}
    v_and_b32 v{FLV}, 7, v0
    s_lshl_b32 s{T[0]}, s{S_W}, 3
    v_add_u32 v{FLV}, s{T[0]}, v{FLV}
    v_lshlrev_b32 v{FLV}, 6, v{FLV}
    s_lshl_b32 s{T[0]}, s{S_W}, 12
    v_add_u32 v13, s{T[0]}, v{L16}
    s_lshl_b32 s{T[0]}, s{S_W}, 10
    v_add_u32 v14, s{T[0]}, v{L16}"""); bar(A); st(4)
    srd(A,XD,P_WS,2048*1152,X2)
    A(f"O_LAYER:\ns_mov_b32 s{S_SEG}, s{S_B}"); xsrd(A,XS,X1)
    A(f"""O_LOOP:
    s_mul_i32 s{T[1]}, s{S_SEG}, 43
    s_lshr_b32 s{T[1]}, s{T[1]}, 7
    s_mul_i32 s{T[1]}, s{T[1]}, 3
    s_sub_u32 s{T[1]}, s{S_SEG}, s{T[1]}
    s_mul_i32 s{T[1]}, s{T[1]}, {32*FS}
    s_add_u32 s{T[1]}, s{T[1]}, {F_ATT*FS}"""); target(A,S_SEG); poll_ge(A,WS,FLV,f"s{T[1]}",f"s{S_TG}",t0,30); st(5); st.mark(3)
    A(f"""s_lshl_b32 s{S_C}, s{S_SEG}, 18
    s_lshl_b32 s{T[0]}, s{S_W}, 16
    s_add_u32 s{S_C}, s{S_C}, s{T[0]}
    s_add_u32 s{S_C}, s{S_C}, s{S_LB}
    s_add_u32 s{S_C}, s{S_C}, {OB}
    s_mul_i32 s{S_D}, s{S_SEG}, 36864""")
    def ld(n):
        A(f"buffer_load_dwordx4 {v(FR+4*(n%NB),4)}, v{L16}, {ws}, s{S_C} offen offset:{(n&3)*1024} sc1")
        if n&3==3: A(f"s_add_u32 s{S_C}, s{S_C}, 4096")
    for n in range(NB): ld(n)
    for n in range(64):
        mf(A,D,a(4*n,4),v(FR+4*(n%NB),4),v(D,16) if n else 0)
        if n+NB<64: ld(n+NB)
        if n+NB==64: A(f"buffer_load_dwordx2 {v(RS,2)}, v{RA}, {xs}, s{S_D} offen sc1")
    for q in range(4): A(f"ds_write_b128 v13, {v(D+4*q,4)} offset:{q*1024}")
    bar(A)
    for q in range(4): A(f"ds_read_b128 {v(D+4*q,4)}, v14 offset:{q*4096}")
    for i in (0,2): A(f"v_pk_add_f32 {v(D+i,2)}, {v(D+i,2)}, {v(D+4+i,2)}\nv_pk_add_f32 {v(D+8+i,2)}, {v(D+8+i,2)}, {v(D+12+i,2)}\nv_pk_add_f32 {v(D+i,2)}, {v(D+i,2)}, {v(D+8+i,2)}")
    resid(A,D,RS)
    A(f"buffer_store_dwordx2 {v(RS,2)}, v{RA}, {xd}, s{S_D} offen sc1"); bar(A,vm=0)
    w0(A,lambda:publish(A,S_FL,S_TG,t0,t1)); st(6); st.mark(4)
    A(f"s_add_u32 s{S_SEG}, s{S_SEG}, 4\ns_cmp_lt_u32 s{S_SEG}, 64\ns_cbranch_scc1 O_LOOP")
    srd(A,XD,P_OUT,2048*1152); nextlayer(A,"O_LAYER"); A("s_branch W_END")
def workers(A,cfg):
    from att import att
    st=Stamp(A,cfg.get('stamp'),real=True)
    setup(A); st.init()
    A(f"s_cmp_ge_u32 s{S_WT}, 216\ns_cbranch_scc1 END\ns_cmp_ge_u32 s{S_WT}, 192\ns_cbranch_scc1 R_ATT")
    a1(A,cfg,st); qkv(A,cfg,st); out(A,cfg,st); att(A,cfg,st)
    A("W_END:"); st.dump(t0,t1)
```

```python
import sys, json
from common import *
import chain
NAME="interleave_layers__linear_attn_block__memory_aug_recurrent_mem_tr__prompt"
def build(cfg):
    MARKS[0]=cfg.get('marks',0); SLP[0]=int(cfg.get('slp',0)); A=Asm(); prologue(A,cfg)
    A(f"s_cmp_ge_u32 s{S_ROLE}, 32\ns_cbranch_scc1 WORKER")
    chain.chain(A,cfg)
    A("WORKER:")
    if not cfg.get('only_chain'):
        import workers; workers.workers(A,cfg)
    A("s_branch END"); epilogue(A)
    ref=open(f"cdna_kernels/{NAME}.s.ref").read().split('\n')
    head=[l for l in ref if l.startswith(';') and '@launch' not in l]
    return "\n".join(head)+f"""
; @launch grid=(256,1,1) block=(256,1,1) lds=163840
.amdgcn_target "amdgcn-amd-amdhsa--gfx950"
.text
.globl {NAME}_kernel
.p2align 8
.type {NAME}_kernel,@function
{NAME}_kernel:
{A.text()}.section .rodata,"a"
.p2align 6
.amdhsa_kernel {NAME}_kernel
  .amdhsa_next_free_vgpr 512
  .amdhsa_next_free_sgpr 102
  .amdhsa_accum_offset 256
  .amdhsa_group_segment_fixed_size 0
  .amdhsa_kernarg_size 104
  .amdhsa_user_sgpr_count 2
  .amdhsa_user_sgpr_kernarg_segment_ptr 1
  .amdhsa_system_sgpr_workgroup_id_x 1
.end_amdhsa_kernel
"""
if __name__=="__main__":
    cfg={k.split('=')[0]:(k.split('=')+[1])[1] for k in sys.argv[2:]}
    for k in 'p1early fragearly nopk nopk2 spread vwarm db2'.split(): cfg.setdefault(k,1)
    cfg.setdefault('vc',7); cfg={k:x for k,x in cfg.items() if x!='0'}
    open(sys.argv[1],"w").write(build(cfg))
```
